```python
import torch

def _softmax(x, axis=-1):
    return torch.softmax(x, dim=axis)

def _gelu(x):
    return torch.nn.functional.gelu(x, approximate='tanh')

def _silu(x):
    return torch.nn.functional.silu(x)

def _sigmoid(x):
    return torch.sigmoid(x)

def _layernorm(x, axis=-1, eps=1e-05):
    m = x.mean(dim=axis, keepdim=True)
    v = x.var(dim=axis, keepdim=True, unbiased=False)
    return (x - m) / torch.sqrt(v + eps)

def _scatter_add(tgt, idx, src, axis=0):
    return tgt.clone().index_add_(axis, idx, src)

def _segment_sum(src, seg, n):
    out = torch.zeros((n,) + src.shape[1:], dtype=src.dtype)
    return out.index_add_(0, seg, src)

def _pad(x, pw):
    flat = tuple((v for pair in reversed(pw) for v in pair))
    return torch.nn.functional.pad(x, flat)
kernel_name = 'standalone__factorization_afm__recsys'

def setup_inputs():

    _w = lambda a: (lambda t: t.to(torch.bfloat16) if t.is_floating_point() else t)(torch.as_tensor(a))
    B, F, D, V = (16384, 26, 32, min(1000, 100000))
    A = D
    ii, jj = tuple(torch.triu_indices(F, F, 1).unbind(0))
    return {'idx': _w((lambda lo, hi, *s: torch.randint(lo, hi, s))(0, V, B, F).to(torch.int64)), 'table': _w((lambda *s: torch.randn(*s, dtype=torch.bfloat16) * 0.4)(V, D)), 'ii': _w(ii.to(torch.int64)), 'jj': _w(jj.to(torch.int64)), 'W': _w((lambda *s: torch.randn(*s, dtype=torch.bfloat16) * 1.6)(D, A) * (1.0 / D ** 0.5)), 'b': _w((lambda *s: torch.randn(*s, dtype=torch.bfloat16) * 1.6)(A)), 'h': _w((lambda *s: torch.randn(*s, dtype=torch.bfloat16) * 1.6)(A)), 'p': _w((lambda *s: torch.randn(*s, dtype=torch.bfloat16) * 0.2)(D))}

def reference(idx, table, ii, jj, W, b, h, p):
    emb = table[idx]
    ei = emb[:, ii, :].clone()
    ej = emb[:, jj, :].clone()
    pair = ei * ej
    hid = pair @ W + b
    hid = 0.5 * (hid + torch.abs(hid))
    e = hid @ h
    alpha = _softmax(e, axis=-1)
    pooled = torch.einsum('bp,bpd->bd', alpha, pair)
    return pooled @ p
```

```python
HDR = '''; Kernarg layout for this problem (88 bytes, ptrs only, base s[0:1]):
'''
class Asm:
    def __init__(self): self.L=[]
    def __call__(self, s):
        for l in s.split('\n'):
            self.L.append(l)
    def text(self): return '\n'.join(self.L)+'\n'
def kd(name, vgpr, sgpr=102, extra=''):
    acc=min(256,(vgpr+3)//4*4)
    return f'''.section .rodata,"a"
.p2align 6
.amdhsa_kernel {name}
  .amdhsa_next_free_vgpr {vgpr}
  .amdhsa_next_free_sgpr {sgpr}
  .amdhsa_accum_offset {acc}
  .amdhsa_group_segment_fixed_size 0
  .amdhsa_kernarg_size 88
  .amdhsa_user_sgpr_count 2
  .amdhsa_user_sgpr_kernarg_segment_ptr 1
  .amdhsa_system_sgpr_workgroup_id_x 1
{extra}.end_amdhsa_kernel
'''
def kstart(name):
    return f'''.text
.globl {name}
.p2align 8
.type {name},@function
{name}:'''
def srd(a, d, ptr, nbytes):
    a(f'''  s_mov_b32 s{d}, s{ptr}
  s_and_b32 s{d+1}, s{ptr+1}, 0xffff
  s_mov_b32 s{d+2}, {nbytes}
  s_mov_b32 s{d+3}, 0x00020000''')

def slow_body(a, pfx):
    a(f'''  s_load_dwordx4 s[4:7], s[0:1], 0
  s_load_dwordx4 s[8:11], s[0:1], 16
  s_load_dwordx4 s[12:15], s[0:1], 32   ; W, b
  s_load_dwordx4 s[16:19], s[0:1], 48   ; h, p
  s_load_dwordx2 s[20:21], s[0:1], 64   ; out
  s_waitcnt lgkmcnt(0)''')
    srd(a,24,4,16384*104)
    srd(a,28,6,64000)
    srd(a,32,8,1300)
    srd(a,36,10,1300)
    srd(a,40,12,2048)
    srd(a,44,14,64)
    srd(a,48,16,64)
    srd(a,52,18,64)
    srd(a,56,20,32768)
    a(f'''  v_lshlrev_b32 v1, 3, v0
  buffer_load_dwordx2 v[2:3], v1, s[40:43], 0 offen
  v_lshlrev_b32 v1, 1, v0
  buffer_load_ushort v4, v1, s[44:47], 0 offen
  buffer_load_ushort v5, v1, s[48:51], 0 offen
  buffer_load_ushort v6, v1, s[52:55], 0 offen
  v_and_b32 v7, 63, v0                  ; lane
  v_lshlrev_b32 v8, 2, v7''')
    for r in range(6):
        a(f'''  buffer_load_dword v{10+r}, v8, s[32:35], 0 offen offset:{256*r}
  buffer_load_dword v{16+r}, v8, s[36:39], 0 offen offset:{256*r}''')
    a(f'''  s_waitcnt vmcnt(0)
  v_lshrrev_b32 v22, 3, v0              ; d
  v_and_b32 v23, 7, v0
  v_lshlrev_b32 v23, 9, v23             ; a0*128 (a0 = 4*(t&7))
  v_lshl_add_u32 v23, v22, 2, v23
  v_lshlrev_b32 v24, 16, v2
  v_and_b32 v25, 0xffff0000, v2
  v_lshlrev_b32 v26, 16, v3
  v_and_b32 v27, 0xffff0000, v3
  ds_write_b32 v23, v24
  ds_write_b32 v23, v25 offset:128
  ds_write_b32 v23, v26 offset:256
  ds_write_b32 v23, v27 offset:384
  v_lshlrev_b32 v4, 16, v4
  v_lshlrev_b32 v5, 16, v5
  v_lshlrev_b32 v6, 16, v6
  v_cmp_gt_u32 vcc, 32, v0
  s_and_saveexec_b64 s[60:61], vcc
  v_lshlrev_b32 v23, 3, v0
  v_lshlrev_b32 v24, 2, v0
  ds_write_b64 v23, v[4:5] offset:4096
  ds_write_b32 v24, v6 offset:4352
  s_mov_b64 exec, s[60:61]
  s_waitcnt lgkmcnt(0)
  s_barrier
  v_lshrrev_b32 v1, 6, v0
  s_nop 0
  v_readfirstlane_b32 s62, v1
  s_lshl_b32 s63, s2, 6
  s_lshl_b32 s62, s62, 4
  s_add_u32 s62, s62, s63
  s_add_u32 s63, s62, 16
  v_mov_b32 v9, 0''')
    for r in range(6):
        a(f'''  v_lshlrev_b32 v{10+r}, 2, v{10+r}
  v_lshlrev_b32 v{16+r}, 2, v{16+r}''')
    a(f'''{pfx}_row:
  s_mul_i32 s64, s62, 104''')
    for r in range(6):
        a(f'''  buffer_load_dword v22, v{10+r}, s[24:27], s64 offen
  buffer_load_dword v23, v{16+r}, s[24:27], s64 offen
  s_waitcnt vmcnt(0)
  v_lshlrev_b32 v22, 6, v22
  v_lshlrev_b32 v23, 6, v23''')
        for q in range(4):
            a(f'''  buffer_load_dwordx4 v[{24+4*q}:{27+4*q}], v22, s[28:31], 0 offen offset:{16*q}
  buffer_load_dwordx4 v[{40+4*q}:{43+4*q}], v23, s[28:31], 0 offen offset:{16*q}''')
        a('  s_waitcnt vmcnt(0)')
        for k in range(16):
            a(f'''  v_lshlrev_b32 v22, 16, v{24+k}
  v_lshlrev_b32 v23, 16, v{40+k}
  v_mul_f32 v{56+2*k}, v22, v23
  v_and_b32 v22, 0xffff0000, v{24+k}
  v_and_b32 v23, 0xffff0000, v{40+k}
  v_mul_f32 v{57+2*k}, v22, v23''')
        for q in range(8):
            a(f'  ds_read_b128 v[{24+4*q}:{27+4*q}], v9 offset:{4352+16*q}')
        a(f'''  s_waitcnt lgkmcnt(0)
  v_mul_f32 v{106+r}, v56, v24''')
        for d in range(1,32):
            a(f'  v_fmac_f32 v{106+r}, v{56+d}, v{24+d}')
        a(f'''  v_mov_b32 v{100+r}, 0
  v_mov_b32 v90, 0
  v_mov_b32 v91, 4096
  s_mov_b32 s65, 0
{pfx}_a{r}:''')
        for q in range(8):
            a(f'  ds_read_b128 v[{24+4*q}:{27+4*q}], v90 offset:{16*q}')
        a(f'''  ds_read_b64 v[92:93], v91
  s_waitcnt lgkmcnt(0)''')
        for d in range(32):
            a(f'  v_fmac_f32 v92, v{56+d}, v{24+d}')
        a(f'''  v_max_f32 v92, 0, v92
  v_fmac_f32 v{100+r}, v92, v93
  v_add_u32 v90, 128, v90
  v_add_u32 v91, 8, v91
  s_add_u32 s65, s65, 1
  s_cmp_lt_u32 s65, 32
  s_cbranch_scc1 {pfx}_a{r}''')
    a(f'''  v_cmp_gt_u32 vcc, 5, v7
  v_mov_b32 v22, 0xff800000
  s_nop 1
  v_cndmask_b32 v105, v22, v105, vcc
  v_mov_b32 v22, 0
  v_cndmask_b32 v111, v22, v111, vcc
  v_max3_f32 v22, v100, v101, v102
  v_max3_f32 v22, v22, v103, v104
  v_max_f32 v22, v22, v105''')
    for m in (1,2,4,8,16,32):
        a(f'''  v_xor_b32 v23, {m}, v7
  v_lshlrev_b32 v23, 2, v23
  ds_bpermute_b32 v24, v23, v22
  s_waitcnt lgkmcnt(0)
  v_max_f32 v22, v22, v24''')
    a('''  v_mov_b32 v25, 0
  v_mov_b32 v26, 0
  v_mov_b32 v27, 0x3fb8aa3b''')
    for r in range(6):
        a(f'''  v_sub_f32 v24, v{100+r}, v22
  v_mul_f32 v24, v24, v27
  v_exp_f32 v24, v24
  s_nop 0
  v_add_f32 v25, v25, v24
  v_fmac_f32 v26, v24, v{106+r}''')
    for m in (1,2,4,8,16,32):
        a(f'''  v_xor_b32 v23, {m}, v7
  v_lshlrev_b32 v23, 2, v23
  ds_bpermute_b32 v24, v23, v25
  ds_bpermute_b32 v28, v23, v26
  s_waitcnt lgkmcnt(0)
  v_add_f32 v25, v25, v24
  v_add_f32 v26, v26, v28''')
    a(f'''  v_rcp_f32 v25, v25
  s_nop 0
  v_mul_f32 v26, v26, v25
  v_cvt_pk_bf16_f32 v26, v26, v26
  s_lshl_b32 s64, s62, 1
  v_cmp_eq_u32 vcc, 0, v7
  s_and_saveexec_b64 s[60:61], vcc
  buffer_store_short v26, v9, s[56:59], s64 offen
  s_mov_b64 exec, s[60:61]
  s_add_u32 s62, s62, 1
  s_cmp_lt_u32 s62, s63
  s_cbranch_scc1 {pfx}_row''')
```

```python
from common import *
import sys
N='standalone__factorization_afm__recsys_kernel'
nd=int(sys.argv[2]) if len(sys.argv)>2 else 0
a=Asm()
h=HDR
if nd==0:
    h+='; @launch grid=(256,1,1) block=(256,1,1) lds=8192\n'
else:
    h+=f'; @launch kernel={N} grid=(256,1,1) block=(256,1,1) lds=8192\n'
    for i in range(nd): h+=f'; @launch kernel=dummy_kernel grid=(256,1,1) block=(256,1,1) lds=0\n'
a(h+'.amdgcn_target "amdgcn-amd-amdhsa--gfx950"')
a(kstart(N))
a('''  s_cmp_ge_u32 s2, 256
  s_cbranch_scc1 L_end''')
slow_body(a,'S')
a('L_end:\n  s_endpgm')
if nd:
    a(kstart('dummy_kernel'))
    a('  s_endpgm')
a(kd(N,112))
if nd: a(kd('dummy_kernel',8))
open(sys.argv[1],'w').write(a.text())
```

```python
HDR = '''; Kernarg layout for this problem (88 bytes, ptrs only, base s[0:1]):
'''
class Asm:
    def __init__(self): self.L=[]
    def __call__(self, s):
        for l in s.split('\n'):
            self.L.append(l)
    def text(self): return '\n'.join(self.L)+'\n'
def kd(name, vgpr, sgpr=102, extra=''):
    acc=min(256,(vgpr+3)//4*4)
    return f'''.section .rodata,"a"
.p2align 6
.amdhsa_kernel {name}
  .amdhsa_next_free_vgpr {vgpr}
  .amdhsa_next_free_sgpr {sgpr}
  .amdhsa_accum_offset {acc}
  .amdhsa_group_segment_fixed_size 0
  .amdhsa_kernarg_size 88
  .amdhsa_user_sgpr_count 2
  .amdhsa_user_sgpr_kernarg_segment_ptr 1
  .amdhsa_system_sgpr_workgroup_id_x 1
{extra}.end_amdhsa_kernel
'''
def kstart(name):
    return f'''.text
.globl {name}
.p2align 8
.type {name},@function
{name}:'''
def srd(a, d, ptr, nbytes):
    a(f'''  s_mov_b32 s{d}, s{ptr}
  s_and_b32 s{d+1}, s{ptr+1}, 0xffff
  s_mov_b32 s{d+2}, {nbytes}
  s_mov_b32 s{d+3}, 0x00020000''')

def slow_body(a, pfx):
    a(f'''  s_load_dwordx4 s[4:7], s[0:1], 0
  s_load_dwordx4 s[8:11], s[0:1], 16
  s_load_dwordx4 s[12:15], s[0:1], 32   ; W, b
  s_load_dwordx4 s[16:19], s[0:1], 48   ; h, p
  s_load_dwordx2 s[20:21], s[0:1], 64   ; out
  s_waitcnt lgkmcnt(0)''')
    srd(a,24,4,16384*104)
    srd(a,28,6,64000)
    srd(a,32,8,1300)
    srd(a,36,10,1300)
    srd(a,40,12,2048)
    srd(a,44,14,64)
    srd(a,48,16,64)
    srd(a,52,18,64)
    srd(a,56,20,32768)
    a(f'''  v_lshlrev_b32 v1, 3, v0
  buffer_load_dwordx2 v[2:3], v1, s[40:43], 0 offen
  v_lshlrev_b32 v1, 1, v0
  buffer_load_ushort v4, v1, s[44:47], 0 offen
  buffer_load_ushort v5, v1, s[48:51], 0 offen
  buffer_load_ushort v6, v1, s[52:55], 0 offen
  v_and_b32 v7, 63, v0                  ; lane
  v_lshlrev_b32 v8, 2, v7''')
    for r in range(6):
        a(f'''  buffer_load_dword v{10+r}, v8, s[32:35], 0 offen offset:{256*r}
  buffer_load_dword v{16+r}, v8, s[36:39], 0 offen offset:{256*r}''')
    a(f'''  s_waitcnt vmcnt(0)
  v_lshrrev_b32 v22, 3, v0              ; d
  v_and_b32 v23, 7, v0
  v_lshlrev_b32 v23, 9, v23             ; a0*128 (a0 = 4*(t&7))
  v_lshl_add_u32 v23, v22, 2, v23
  v_lshlrev_b32 v24, 16, v2
  v_and_b32 v25, 0xffff0000, v2
  v_lshlrev_b32 v26, 16, v3
  v_and_b32 v27, 0xffff0000, v3
  ds_write_b32 v23, v24
  ds_write_b32 v23, v25 offset:128
  ds_write_b32 v23, v26 offset:256
  ds_write_b32 v23, v27 offset:384
  v_lshlrev_b32 v4, 16, v4
  v_lshlrev_b32 v5, 16, v5
  v_lshlrev_b32 v6, 16, v6
  v_cmp_gt_u32 vcc, 32, v0
  s_and_saveexec_b64 s[60:61], vcc
  v_lshlrev_b32 v23, 3, v0
  v_lshlrev_b32 v24, 2, v0
  ds_write_b64 v23, v[4:5] offset:4096
  ds_write_b32 v24, v6 offset:4352
  s_mov_b64 exec, s[60:61]
  s_waitcnt lgkmcnt(0)
  s_barrier
  v_lshrrev_b32 v1, 6, v0
  s_nop 0
  v_readfirstlane_b32 s62, v1
  s_lshl_b32 s63, s2, 6
  s_lshl_b32 s62, s62, 4
  s_add_u32 s62, s62, s63
  s_add_u32 s63, s62, 16
  v_mov_b32 v9, 0''')
    for r in range(6):
        a(f'''  v_lshlrev_b32 v{10+r}, 2, v{10+r}
  v_lshlrev_b32 v{16+r}, 2, v{16+r}''')
    a(f'''{pfx}_row:
  s_mul_i32 s64, s62, 104''')
    for r in range(6):
        a(f'''  buffer_load_dword v22, v{10+r}, s[24:27], s64 offen
  buffer_load_dword v23, v{16+r}, s[24:27], s64 offen
  s_waitcnt vmcnt(0)
  v_lshlrev_b32 v22, 6, v22
  v_lshlrev_b32 v23, 6, v23''')
        for q in range(4):
            a(f'''  buffer_load_dwordx4 v[{24+4*q}:{27+4*q}], v22, s[28:31], 0 offen offset:{16*q}
  buffer_load_dwordx4 v[{40+4*q}:{43+4*q}], v23, s[28:31], 0 offen offset:{16*q}''')
        a('  s_waitcnt vmcnt(0)')
        for k in range(16):
            a(f'''  v_lshlrev_b32 v22, 16, v{24+k}
  v_lshlrev_b32 v23, 16, v{40+k}
  v_mul_f32 v{56+2*k}, v22, v23
  v_and_b32 v22, 0xffff0000, v{24+k}
  v_and_b32 v23, 0xffff0000, v{40+k}
  v_mul_f32 v{57+2*k}, v22, v23''')
        for q in range(8):
            a(f'  ds_read_b128 v[{24+4*q}:{27+4*q}], v9 offset:{4352+16*q}')
        a(f'''  s_waitcnt lgkmcnt(0)
  v_mul_f32 v{106+r}, v56, v24''')
        for d in range(1,32):
            a(f'  v_fmac_f32 v{106+r}, v{56+d}, v{24+d}')
        a(f'''  v_mov_b32 v{100+r}, 0
  v_mov_b32 v90, 0
  v_mov_b32 v91, 4096
  s_mov_b32 s65, 0
{pfx}_a{r}:''')
        for q in range(8):
            a(f'  ds_read_b128 v[{24+4*q}:{27+4*q}], v90 offset:{16*q}')
        a(f'''  ds_read_b64 v[92:93], v91
  s_waitcnt lgkmcnt(0)''')
        for d in range(32):
            a(f'  v_fmac_f32 v92, v{56+d}, v{24+d}')
        a(f'''  v_max_f32 v92, 0, v92
  v_fmac_f32 v{100+r}, v92, v93
  v_add_u32 v90, 128, v90
  v_add_u32 v91, 8, v91
  s_add_u32 s65, s65, 1
  s_cmp_lt_u32 s65, 32
  s_cbranch_scc1 {pfx}_a{r}''')
    a(f'''  v_cmp_gt_u32 vcc, 5, v7
  v_mov_b32 v22, 0xff800000
  s_nop 1
  v_cndmask_b32 v105, v22, v105, vcc
  v_mov_b32 v22, 0
  v_cndmask_b32 v111, v22, v111, vcc
  v_max3_f32 v22, v100, v101, v102
  v_max3_f32 v22, v22, v103, v104
  v_max_f32 v22, v22, v105''')
    for m in (1,2,4,8,16,32):
        a(f'''  v_xor_b32 v23, {m}, v7
  v_lshlrev_b32 v23, 2, v23
  ds_bpermute_b32 v24, v23, v22
  s_waitcnt lgkmcnt(0)
  v_max_f32 v22, v22, v24''')
    a('''  v_mov_b32 v25, 0
  v_mov_b32 v26, 0
  v_mov_b32 v27, 0x3fb8aa3b''')
    for r in range(6):
        a(f'''  v_sub_f32 v24, v{100+r}, v22
  v_mul_f32 v24, v24, v27
  v_exp_f32 v24, v24
  s_nop 0
  v_add_f32 v25, v25, v24
  v_fmac_f32 v26, v24, v{106+r}''')
    for m in (1,2,4,8,16,32):
        a(f'''  v_xor_b32 v23, {m}, v7
  v_lshlrev_b32 v23, 2, v23
  ds_bpermute_b32 v24, v23, v25
  ds_bpermute_b32 v28, v23, v26
  s_waitcnt lgkmcnt(0)
  v_add_f32 v25, v25, v24
  v_add_f32 v26, v26, v28''')
    a(f'''  v_rcp_f32 v25, v25
  s_nop 0
  v_mul_f32 v26, v26, v25
  v_cvt_pk_bf16_f32 v26, v26, v26
  s_lshl_b32 s64, s62, 1
  v_cmp_eq_u32 vcc, 0, v7
  s_and_saveexec_b64 s[60:61], vcc
  buffer_store_short v26, v9, s[56:59], s64 offen
  s_mov_b64 exec, s[60:61]
  s_add_u32 s62, s62, 1
  s_cmp_lt_u32 s62, s63
  s_cbranch_scc1 {pfx}_row''')

def slow_wave(a, pfx):
    a(f'''  s_mov_b64 s[66:67], s[50:51]
  s_load_dwordx4 s[4:7], s[0:1], 0
  s_load_dwordx4 s[8:11], s[0:1], 16
  s_load_dwordx4 s[12:15], s[0:1], 32   ; W, b
  s_load_dwordx4 s[16:19], s[0:1], 48   ; h, p
  s_load_dwordx2 s[20:21], s[0:1], 64   ; out
  s_waitcnt lgkmcnt(0) vmcnt(0)''')
    srd(a,24,4,16384*104); srd(a,28,6,64000); srd(a,32,8,1300); srd(a,36,10,1300)
    srd(a,40,12,2048); srd(a,44,14,64); srd(a,48,16,64); srd(a,52,18,64); srd(a,56,20,32768)
    a(f'''  v_mov_b32 v7, v1
  v_lshlrev_b32 v1, 1, v7
  buffer_load_ushort v4, v1, s[44:47], 0 offen
  buffer_load_ushort v5, v1, s[48:51], 0 offen
  buffer_load_ushort v6, v1, s[52:55], 0 offen
  v_lshlrev_b32 v8, 2, v7''')
    for r in range(6):
        a(f'''  buffer_load_dword v{10+r}, v8, s[32:35], 0 offen offset:{256*r}
  buffer_load_dword v{16+r}, v8, s[36:39], 0 offen offset:{256*r}''')
    a(f'''  v_lshlrev_b32 v1, 3, v7
  v_lshrrev_b32 v22, 3, v7
  v_and_b32 v23, 7, v7
  v_lshlrev_b32 v23, 9, v23
  v_lshl_add_u32 v23, v22, 2, v23''')
    for q in range(4):
        a(f'''  buffer_load_dwordx2 v[2:3], v1, s[40:43], 0 offen offset:{512*q}
  s_waitcnt vmcnt(0)
  v_lshlrev_b32 v24, 16, v2
  v_and_b32 v25, 0xffff0000, v2
  v_lshlrev_b32 v26, 16, v3
  v_and_b32 v27, 0xffff0000, v3
  ds_write_b32 v23, v24 offset:{32*q}
  ds_write_b32 v23, v25 offset:{128+32*q}
  ds_write_b32 v23, v26 offset:{256+32*q}
  ds_write_b32 v23, v27 offset:{384+32*q}''')
    a(f'''  v_lshlrev_b32 v4, 16, v4
  v_lshlrev_b32 v5, 16, v5
  v_lshlrev_b32 v6, 16, v6
  s_mov_b64 exec, 0xffffffff
  v_lshlrev_b32 v23, 3, v7
  v_lshlrev_b32 v24, 2, v7
  ds_write_b64 v23, v[4:5] offset:4096
  ds_write_b32 v24, v6 offset:4352
  s_mov_b64 exec, -1
  s_waitcnt lgkmcnt(0)
  v_mov_b32 v9, 0''')
    for r in range(6):
        a(f'''  v_lshlrev_b32 v{10+r}, 2, v{10+r}
  v_lshlrev_b32 v{16+r}, 2, v{16+r}''')
    a(f'''{pfx}_row:
  s_ff1_i32_b64 s62, s[66:67]
  s_bitset0_b64 s[66:67], s62
  s_lshl_b32 s63, s2, 6
  s_add_u32 s62, s62, s63
  s_mul_i32 s64, s62, 104
  s_mov_b32 s68, 0
{pfx}_rnd:
  buffer_load_dword v22, v10, s[24:27], s64 offen
  buffer_load_dword v23, v16, s[24:27], s64 offen
  s_waitcnt vmcnt(0)
  v_lshlrev_b32 v22, 6, v22
  v_lshlrev_b32 v23, 6, v23''')
    for q in range(4):
        a(f'''  buffer_load_dwordx4 v[{24+4*q}:{27+4*q}], v22, s[28:31], 0 offen offset:{16*q}
  buffer_load_dwordx4 v[{40+4*q}:{43+4*q}], v23, s[28:31], 0 offen offset:{16*q}''')
    a('  s_waitcnt vmcnt(0)')
    for k in range(16):
        a(f'''  v_lshlrev_b32 v22, 16, v{24+k}
  v_lshlrev_b32 v23, 16, v{40+k}
  v_mul_f32 v{56+2*k}, v22, v23
  v_and_b32 v22, 0xffff0000, v{24+k}
  v_and_b32 v23, 0xffff0000, v{40+k}
  v_mul_f32 v{57+2*k}, v22, v23''')
    for q in range(8):
        a(f'  ds_read_b128 v[{24+4*q}:{27+4*q}], v9 offset:{4352+16*q}')
    a(f'''  s_waitcnt lgkmcnt(0)
  v_mul_f32 v95, v56, v24''')
    for d in range(1,32):
        a(f'  v_fmac_f32 v95, v{56+d}, v{24+d}')
    a(f'''  v_mov_b32 v94, 0
  v_mov_b32 v90, 0
  v_mov_b32 v91, 4096
  s_mov_b32 s65, 0
{pfx}_a:''')
    for q in range(8):
        a(f'  ds_read_b128 v[{24+4*q}:{27+4*q}], v90 offset:{16*q}')
    a(f'''  ds_read_b64 v[92:93], v91
  s_waitcnt lgkmcnt(0)''')
    for d in range(32):
        a(f'  v_fmac_f32 v92, v{56+d}, v{24+d}')
    a(f'''  v_max_f32 v92, 0, v92
  v_fmac_f32 v94, v92, v93
  v_add_u32 v90, 128, v90
  v_add_u32 v91, 8, v91
  s_add_u32 s65, s65, 1
  s_cmp_lt_u32 s65, 32
  s_cbranch_scc1 {pfx}_a
  ; rotate: results into v100..105 / v106..111 (last round ends in v105/v111), pair offsets rotate through v10..15 / v16..21''')
    for r in range(5):
        a(f'''  v_mov_b32 v{100+r}, v{101+r}
  v_mov_b32 v{106+r}, v{107+r}''')
    a('''  v_mov_b32 v105, v94
  v_mov_b32 v111, v95
  v_mov_b32 v22, v10
  v_mov_b32 v23, v16''')
    for r in range(5):
        a(f'''  v_mov_b32 v{10+r}, v{11+r}
  v_mov_b32 v{16+r}, v{17+r}''')
    a(f'''  v_mov_b32 v15, v22
  v_mov_b32 v21, v23
  s_add_u32 s68, s68, 1
  s_cmp_lt_u32 s68, 6
  s_cbranch_scc1 {pfx}_rnd
  v_cmp_gt_u32 vcc, 5, v7
  v_mov_b32 v22, 0xff800000
  s_nop 1
  v_cndmask_b32 v105, v22, v105, vcc
  v_mov_b32 v22, 0
  v_cndmask_b32 v111, v22, v111, vcc
  v_max3_f32 v22, v100, v101, v102
  v_max3_f32 v22, v22, v103, v104
  v_max_f32 v22, v22, v105''')
    for m in (1,2,4,8,16,32):
        a(f'''  v_xor_b32 v23, {m}, v7
  v_lshlrev_b32 v23, 2, v23
  ds_bpermute_b32 v24, v23, v22
  s_waitcnt lgkmcnt(0)
  v_max_f32 v22, v22, v24''')
    a('''  v_mov_b32 v25, 0
  v_mov_b32 v26, 0
  v_mov_b32 v27, 0x3fb8aa3b''')
    for r in range(6):
        a(f'''  v_sub_f32 v24, v{100+r}, v22
  v_mul_f32 v24, v24, v27
  v_exp_f32 v24, v24
  s_nop 0
  v_add_f32 v25, v25, v24
  v_fmac_f32 v26, v24, v{106+r}''')
    for m in (1,2,4,8,16,32):
        a(f'''  v_xor_b32 v23, {m}, v7
  v_lshlrev_b32 v23, 2, v23
  ds_bpermute_b32 v24, v23, v25
  ds_bpermute_b32 v28, v23, v26
  s_waitcnt lgkmcnt(0)
  v_add_f32 v25, v25, v24
  v_add_f32 v26, v26, v28''')
    a(f'''  v_rcp_f32 v25, v25
  s_nop 0
  v_mul_f32 v26, v26, v25
  v_cvt_pk_bf16_f32 v26, v26, v26
  s_lshl_b32 s64, s62, 1
  s_mov_b64 exec, 1
  buffer_store_short v26, v9, s[56:59], s64 offen
  s_mov_b64 exec, -1
  s_cmp_lg_u64 s[66:67], 0
  s_cbranch_scc1 {pfx}_row''')
```

```python
from common import *
import sys
STAMP = 'stamp' in sys.argv
MODE = 'a' if 'modea' in sys.argv else 'b'
N='standalone__factorization_afm__recsys_kernel'
SLICE=0; STAGE=32768; CNT=61440; DONE=62464; EXT=62592; OFFP=73856; PAR=82048; TAB=84992; CAP=320
MAP=EXT; RES=STAGE; PART=OFFP
LDSZ=TAB+65536
NITEM=1792
WS_FLAG=1024; WS_DESC=4096; WS_ITEMS=1<<20; WS_RES=16<<20; WS_STAMP=128<<20
SPIN=200000
a=Asm()
def stamp(k):
    if STAMP: a(f'  s_memrealtime s[{64+2*k}:{65+2*k}]')
def stamp_init():
    if STAMP:
        for k in range(16): a(f'  s_mov_b32 s{64+2*k}, 0')
def stamp_flush(tmp):
    if STAMP:
        a('  s_waitcnt lgkmcnt(0)\n  s_mov_b64 exec, -1')
        a(f'''  s_add_u32 s44, s18, {WS_STAMP}
  s_addc_u32 s45, s19, 0
  s_and_b32 s45, s45, 0xffff
  s_mov_b32 s46, {256*16*128}
  s_mov_b32 s47, 0x00020000
  v_mov_b32 v{tmp}, 0''')
        for k in range(16): a(f'  v_writelane_b32 v{tmp}, s{64+2*k}, {k}')
        a(f'''  s_lshl_b32 s48, s2, 4
  s_add_u32 s48, s48, s20
  s_lshl_b32 s48, s48, 7
  v_mbcnt_lo_u32_b32 v{tmp+1}, -1, 0
  v_mbcnt_hi_u32_b32 v{tmp+1}, -1, v{tmp+1}
  v_lshlrev_b32 v{tmp+1}, 2, v{tmp+1}
  s_mov_b64 exec, 0xffff
  buffer_store_dword v{tmp}, v{tmp+1}, s[44:47], s48 offen
  s_mov_b64 exec, -1''')
def srd_off(d, ptr, off, nbytes):
    a(f'''  s_add_u32 s{d}, s{ptr}, {off}
  s_addc_u32 s{d+1}, s{ptr+1}, 0
  s_and_b32 s{d+1}, s{d+1}, 0xffff
  s_mov_b32 s{d+2}, {nbytes}
  s_mov_b32 s{d+3}, 0x00020000''')
def scan(v, full=True):
    for sh in (1,2,4,8):
        a(f'  s_nop 1\n  v_add_u32_dpp v{v}, v{v}, v{v} row_shr:{sh} row_mask:0xf bank_mask:0xf')
    a(f'  s_nop 1\n  v_add_u32_dpp v{v}, v{v}, v{v} row_bcast:15 row_mask:0xa bank_mask:0xf')
    if full: a(f'  s_nop 1\n  v_add_u32_dpp v{v}, v{v}, v{v} row_bcast:31 row_mask:0xc bank_mask:0xf')

a(HDR+f'; @launch grid=(256,1,1) block=(1024,1,1) lds={LDSZ}\n.amdgcn_target "amdgcn-amd-amdhsa--gfx950"')
a(kstart(N))
a('''  s_cmp_ge_u32 s2, 256
  s_cbranch_scc1 L_end''')
stamp_init(); stamp(0)
a('''  s_load_dwordx4 s[4:7], s[0:1], 0
  s_load_dwordx2 s[18:19], s[0:1], 80
  s_load_dwordx4 s[8:11], s[0:1], 32
  s_load_dwordx4 s[12:15], s[0:1], 48
  s_load_dwordx2 s[16:17], s[0:1], 64
  v_lshrrev_b32 v2, 6, v0
  v_and_b32 v1, 63, v0
  v_readfirstlane_b32 s20, v2
  s_nop 3
  s_cmp_ge_u32 s20, 8
  s_cbranch_scc1 L_T''')
a('''  s_setprio 2
  v_lshlrev_b32 v3, 4, v0               ; t*16
  s_mul_i32 s21, s2, 6656
  s_waitcnt lgkmcnt(0)''')
stamp(1)
a('''  s_add_u32 s24, s4, s21
  s_addc_u32 s25, s5, 0
  s_and_b32 s25, s25, 0xffff
  s_mov_b32 s26, 6656
  s_mov_b32 s27, 0x00020000
  buffer_load_dwordx4 v[4:7], v3, s[24:27], 0 offen''')
srd_off(28,18,0,WS_DESC+256*2048)
a('''  v_mov_b32 v9, 0
  buffer_load_dword v8, v9, s[28:31], 0 offen sc1''')
srd_off(32,18,WS_ITEMS,256*NITEM*16)
srd_off(36,18,WS_RES,256*NITEM*8)
srd(a,40,16,32768)
a(f'''  s_mul_i32 s22, s2, {NITEM*8}
  v_mov_b32 v10, -1
  v_mov_b32 v11, -1
  v_mov_b32 v12, -1
  v_mov_b32 v13, -1
  buffer_store_dwordx4 v[10:13], v3, s[36:39], s22 offen sc1
  s_add_u32 s23, s22, 8192
  s_cmp_ge_u32 s20, 6
  s_cselect_b32 s23, 0x40000000, s23
  buffer_store_dwordx4 v[10:13], v3, s[36:39], s23 offen sc1''')
NM=2
if MODE=='b':
    a(f'''  s_mul_i32 s22, s2, {NITEM*16}
  buffer_store_dwordx4 v[10:13], v3, s[32:35], s22 offen sc1
  s_add_u32 s23, s22, 8192
  buffer_store_dwordx4 v[10:13], v3, s[32:35], s23 offen sc1
  s_add_u32 s23, s22, 16384
  buffer_store_dwordx4 v[10:13], v3, s[32:35], s23 offen sc1
  s_add_u32 s23, s22, 24576
  s_cmp_ge_u32 s20, 4
  s_cselect_b32 s23, 0x40000000, s23
  buffer_store_dwordx4 v[10:13], v3, s[32:35], s23 offen sc1''')
    NM=6
a(f'''  v_lshlrev_b32 v22, 2, v0
  v_mov_b32 v30, {EXT}''')
for k in range(4):
    a(f'''  v_add_u32 v23, {k}, v22
  v_mul_u32_u24 v24, 2521, v23
  v_lshrrev_b32 v24, 16, v24            ; row
  v_mul_u32_u24 v25, 26, v24
  v_sub_u32 v25, v23, v25               ; f
  v_mul_u32_u24 v24, 176, v24
  v_add_u32 v24, v30, v24
  v_subrev_u32 v26, 1, v25
  v_min_u32 v27, 40, v26                ; slot
  v_lshl_add_u32 v{14+k}, v27, 2, v24
  v_add_u32 v27, 25, v26
  v_cmp_gt_u32 vcc, 15, v26
  v_mov_b32 v28, 43
  s_nop 0
  v_cndmask_b32 v27, v28, v27, vcc
  v_lshl_add_u32 v{18+k}, v27, 2, v24''')
a(f'''  s_cmp_eq_u32 s20, 7
  s_cbranch_scc0 L_extw
  v_mov_b32 v22, 0
  v_mov_b32 v23, 0
  v_mov_b32 v24, 0
  v_mov_b32 v25, 0
  v_lshlrev_b32 v26, 4, v1
  ds_write_b128 v26, v[22:25] offset:{CNT}
  ds_write_b32 v22, v22 offset:{DONE}
  s_waitcnt vmcnt({NM})
  s_branch L_extdone
L_extw:
  v_cmp_gt_u32 vcc, 416, v0
  s_and_saveexec_b64 s[50:51], vcc
  s_waitcnt vmcnt({NM})''')
stamp(2)
for k in range(4):
    a(f'''  ds_write_b32 v{14+k}, v{4+k}
  ds_write_b32 v{18+k}, v{4+k}''')
a('''  s_mov_b64 exec, s[50:51]
L_extdone:
  v_add_u32 v8, 1, v8
  s_waitcnt lgkmcnt(0)
  s_barrier''')
stamp(3)
a(f'''  v_mul_u32_u24 v2, 176, v1
  v_mov_b32 v3, 1
  s_cmp_ge_u32 s20, 6
  s_cbranch_scc1 L_w67
  s_lshl_b32 s21, s20, 4
  v_add_u32 v2, s21, v2''')
E=lambda k:58+k
for q in range(4):
    a(f'  ds_read_b128 v[{E(4*q)}:{E(4*q+3)}], v2 offset:{EXT+16*q}')
a('  s_waitcnt lgkmcnt(3)')
for i in range(4):
    a(f'''  v_and_b32 v{4+i}, 0x3fc, v{E(i)}
  ds_add_rtn_u32 v{14+i}, v{4+i}, v3 offset:{CNT}''')
a('  s_waitcnt lgkmcnt(4)')
def pack(dst,f0,f1,f2,c=None):
    a(f'''  v_lshl_or_b32 v{dst}, {f1}, 10, {f0}
  v_lshl_or_b32 v{dst}, {f2}, 20, v{dst}''')
    if c is not None: a(f'  v_lshl_or_b32 v{dst}, {c}, 30, v{dst}')
    a(f'  v_alignbit_b32 v{dst}, v{dst}, v{dst}, 29')
for i in range(4):
    for m in range(4):
        pack(40+4*i+m, f'v{E(i+1+3*m)}', f'v{E(i+2+3*m)}', f'v{E(i+3+3*m)}', f'v{E(i)}' if m==0 else None)
a(f'''  s_branch L_packed
L_w67:
  s_cmp_eq_u32 s20, 7
  s_cbranch_scc1 L_packed''')
for q in range(7):
    a(f'  ds_read_b128 v[{E(4*q)}:{E(4*q+3)}], v2 offset:{EXT+16*q}')
a(f'''  ds_read_b32 v86, v2 offset:{EXT+160}
  s_waitcnt lgkmcnt(0)
  v_and_b32 v4, 0x3fc, v{E(24)}
  v_and_b32 v5, 0x3fc, v86
  v_mov_b32 v6, v5
  v_mov_b32 v7, v5''')
for i in range(4):
    a(f'  ds_add_rtn_u32 v{14+i}, v{4+i}, v3 offset:{CNT}')
a('  v_mov_b32 v87, 0x3ff')
for m in range(4):
    pack(40+m, f'v{E(3*m)}', f'v{E(3*m+1)}', f'v{E(3*m+2)}', f'v{E(24)}' if m==0 else None)
for m in range(4):
    pack(44+m, f'v{E(3*m)}', f'v{E(3*m+1)}', f'v{E(3*m+2)}', 'v86' if m==0 else None)
for m in range(4):
    pack(48+m, f'v{E(12+3*m)}', f'v{E(13+3*m)}', f'v{E(14+3*m)}', 'v86' if m==0 else None)
pack(52, f'v{E(24)}', 'v87', 'v87', 'v86')
pack(53, 'v87','v87','v87')
a(f'''  v_mov_b32 v54, v53
  v_mov_b32 v55, v53
L_packed:
  s_waitcnt lgkmcnt(0){' vmcnt(0)' if MODE=='b' else ''}
  s_barrier''')
stamp(4)
a(f'''  v_lshlrev_b32 v2, 4, v1
  ds_read_b128 v[20:23], v2 offset:{CNT}
  s_lshl_b32 s21, s20, 10
  s_add_u32 s21, s21, {OFFP}
  v_add_u32 v3, s21, v2
  s_waitcnt lgkmcnt(0)
  v_add_u32 v28, v20, v21
  v_add3_u32 v28, v28, v22, v23
  v_mov_b32 v29, v28''')
scan(29)
a(f'''  v_sub_u32 v24, v29, v28
  v_add_u32 v25, v24, v20
  v_add_u32 v26, v25, v21
  v_add_u32 v27, v26, v22
  s_cmp_eq_u32 s20, 7
  s_cbranch_scc0 L_dostage
  v_lshlrev_b32 v4, 13, v1
  s_lshl_b32 s21, s2, 3
  s_add_u32 s21, s21, {WS_DESC}
  s_add_u32 s22, s21, 4096''')
for k in range(4):
    a(f'''  v_lshl_or_b32 v{56+2*k}, v{20+k}, 16, v{24+k}
  v_mov_b32 v{57+2*k}, v8
  buffer_store_dwordx2 v[{56+2*k}:{57+2*k}], v4, s[28:31], s{21+(k>>1)} offen offset:{2048*(k&1)} sc1''')
a(f'''  s_branch L_staged
L_dostage:
  ds_write_b128 v3, v[24:27]''')
for i in range(4): a(f'  v_add_u32 v{4+i}, s21, v{4+i}')
a('  s_waitcnt lgkmcnt(0)')
for i in range(4): a(f'  ds_read_b32 v{4+i}, v{4+i}')
for i in range(4):
    a(f'''  s_waitcnt lgkmcnt(3)
  v_add_u32 v{14+i}, v{14+i}, v{4+i}      ; pos
  v_lshlrev_b32 v{4+i}, 4, v{14+i}
  ds_write_b128 v{4+i}, v[{40+4*i}:{43+4*i}] offset:{STAGE}''')
a('''L_staged:
  s_waitcnt lgkmcnt(0)
  s_barrier''')
stamp(5)
a(f'''  v_lshlrev_b32 v3, 4, v0
  s_mul_i32 s21, s2, {NITEM*16}''')
for j in range(4): a(f'  ds_read_b128 v[{40+4*j}:{43+4*j}], v3 offset:{STAGE+8192*j}')
a(f'''  s_add_u32 s22, s21, 8192
  s_add_u32 s23, s21, 16384
  s_add_u32 s48, s21, 24576
  s_cmp_ge_u32 s20, 4
  s_cselect_b32 s48, 0x40000000, s48
  s_waitcnt lgkmcnt(3)
  buffer_store_dwordx4 v[40:43], v3, s[32:35], s21 offen sc1
  s_waitcnt lgkmcnt(2)
  buffer_store_dwordx4 v[44:47], v3, s[32:35], s22 offen sc1
  s_waitcnt lgkmcnt(1)
  buffer_store_dwordx4 v[48:51], v3, s[32:35], s23 offen sc1
  s_waitcnt lgkmcnt(0)
  buffer_store_dwordx4 v[52:55], v3, s[32:35], s48 offen sc1''')
if MODE=='a':
    a(f'''  v_mov_b32 v2, 0
  v_mov_b32 v3, 1
  s_lshl_b32 s21, s2, 2
  s_add_u32 s21, s21, {WS_FLAG}
  s_mov_b64 exec, 1
  s_waitcnt vmcnt(0)
  ds_add_rtn_u32 v5, v2, v3 offset:{DONE}
  s_waitcnt lgkmcnt(0)
  v_readfirstlane_b32 s22, v5
  s_nop 3
  s_cmp_eq_u32 s22, 7
  s_cbranch_scc0 L_noflag
  buffer_store_dword v8, v2, s[28:31], s21 offen sc1
L_noflag:
  s_mov_b64 exec, -1''')
stamp(6)
a(f'''  s_cmp_ge_u32 s2, 250
  s_cbranch_scc1 L_C
  v_and_b32 v2, 31, v1
  s_lshl_b32 s21, s20, 5
  v_add_u32 v2, s21, v2                 ; src
  v_lshlrev_b32 v3, 3, v2
  s_lshl_b32 s21, s2, 11
  s_add_u32 s21, s21, {WS_DESC}
  s_mov_b32 s22, {SPIN}
L_pd:
  buffer_load_dwordx2 v[4:5], v3, s[28:31], s21 offen sc1
  s_waitcnt vmcnt(0)
  v_cmp_ne_u32 vcc, v5, v8
  s_cbranch_vccz L_pdok
  s_sub_u32 s22, s22, 1
  s_cmp_lg_u32 s22, 0
  s_cbranch_scc1 L_pd
  v_mov_b32 v4, 0
L_pdok:''')
stamp(7)
a(f'''  v_lshrrev_b32 v6, 16, v4              ; count
  v_and_b32 v4, 0xffff, v4              ; start
  v_mov_b32 v7, v6
  v_lshlrev_b32 v29, 2, v2
  v_mul_u32_u24 v2, {NITEM}, v2''')
scan(7, full=False)
a(f'''  v_add_u32 v4, v2, v4                  ; g0
  v_readlane_b32 s23, v7, 31            ; N_w
  v_sub_u32 v7, v7, v6                  ; prefix
  s_mul_i32 s21, s20, {CAP*4}
  s_add_u32 s21, s21, {MAP}
  s_mov_b32 s52, 0                      ; base
  s_mov_b32 s53, 0
  v_mov_b32 v31, 0x1ff8
L_pass:
  v_lshrrev_b32 v9, 5, v1               ; k
  v_subrev_u32 v10, s52, v7
  v_add_u32 v10, v10, v9
  v_add_u32 v11, v4, v9                 ; g0+k
  v_mov_b32 v12, {CAP}
L_exp:
  v_cmpx_lt_u32 vcc, v9, v6
  s_cbranch_execz L_expdone
  v_lshl_add_u32 v13, v10, 2, s21
  v_cmpx_lt_u32 vcc, v10, v12
  ds_write_b32 v13, v11
  s_mov_b64 exec, -1
  v_add_u32 v9, 2, v9
  v_add_u32 v10, 2, v10
  v_add_u32 v11, 2, v11
  s_branch L_exp
L_expdone:
  s_mov_b64 exec, -1
  v_lshl_add_u32 v13, v1, 2, s21
  s_sub_u32 s54, s23, s52               ; remaining
  v_mov_b32 v12, 0x1000000
  s_waitcnt lgkmcnt(0)''')
G=lambda j:32+j
I=lambda j:40+4*j
for j in range(5): a(f'  ds_read_b32 v{G(j)}, v13 offset:{256*j}')
if MODE=='a':
    stamp(13)
    a(f'''  s_mov_b32 s22, {SPIN}
L_pf:
  buffer_load_dword v5, v29, s[28:31], 0 offen offset:{WS_FLAG} sc1
  s_waitcnt vmcnt(0)
  v_cmp_ne_u32 vcc, v5, v8
  s_cbranch_vccz L_pfok
  s_sub_u32 s22, s22, 1
  s_cmp_lg_u32 s22, 0
  s_cbranch_scc1 L_pf
L_pfok:''')
for j in range(5):
    a(f'''  v_add_u32 v9, {64*j}, v1
  v_cmp_gt_u32 vcc, s54, v9
  s_waitcnt lgkmcnt({4-j})
  s_nop 0
  v_cndmask_b32 v{G(j)}, v12, v{G(j)}, vcc
  v_lshlrev_b32 v9, 4, v{G(j)}
  buffer_load_dwordx4 v[{I(j)}:{I(j)+3}], v9, s[32:35], 0 offen sc1
  v_lshlrev_b32 v{G(j)}, 3, v{G(j)}''')
stamp(8)
a('''  s_cmp_lg_u32 s53, 0
  s_cbranch_scc1 L_nob4
  s_barrier
  s_mov_b32 s53, 1
L_nob4:''')
stamp(9)
AD=60; DT=72
for j in range(5):
    if j>0:
        a(f'''  s_cmp_le_u32 s54, {64*j}
  s_cbranch_scc1 L_stepsdone''')
    a(f'  s_waitcnt vmcnt(4)')
    if MODE=='b':
        a(f'''  s_mov_b32 s22, {SPIN}
L_pi{j}:
  v_max3_u32 v30, v{I(j)}, v{I(j)+1}, v{I(j)+2}
  v_max_u32 v30, v30, v{I(j)+3}
  v_cmpx_eq_u32 vcc, -1, v30
  s_cbranch_execz L_piok{j}
  v_lshlrev_b32 v9, 1, v{G(j)}
  buffer_load_dwordx4 v[{I(j)}:{I(j)+3}], v9, s[32:35], 0 offen sc1
  s_mov_b64 exec, -1
  s_waitcnt vmcnt(0)
  s_sub_u32 s22, s22, 1
  s_cmp_lg_u32 s22, 0
  s_cbranch_scc1 L_pi{j}
L_piok{j}:
  s_mov_b64 exec, -1''')
    if j==0: stamp(14)
    a(f'''  v_and_b32 v30, 6, v{I(j)}
  v_lshlrev_b32 v30, 12, v30''')
    for m in range(4):
        w=I(j)+m
        a(f'''  v_and_or_b32 v{AD+3*m}, v{w}, v31, v30
  ds_read_b64 v[{DT+6*m}:{DT+6*m+1}], v{AD+3*m}
  v_alignbit_b32 v{AD+3*m+1}, v{w}, v{w}, 10
  v_alignbit_b32 v{AD+3*m+2}, v{w}, v{w}, 20
  v_and_or_b32 v{AD+3*m+1}, v{AD+3*m+1}, v31, v30
  v_and_or_b32 v{AD+3*m+2}, v{AD+3*m+2}, v31, v30
  ds_read_b64 v[{DT+6*m+2}:{DT+6*m+3}], v{AD+3*m+1}
  ds_read_b64 v[{DT+6*m+4}:{DT+6*m+5}], v{AD+3*m+2}''')
    for r in range(1,12):
        a(f'''  s_waitcnt lgkmcnt({11-r})
  v_pk_add_f32 v[{DT}:{DT+1}], v[{DT}:{DT+1}], v[{DT+2*r}:{DT+2*r+1}]''')
    a(f'''  v_min_u32 v{DT}, -2, v{DT}
  v_min_u32 v{DT+1}, -2, v{DT+1}
  buffer_store_dwordx2 v[{DT}:{DT+1}], v{G(j)}, s[36:39], 0 offen sc1''')
a(f'''L_stepsdone:
  s_add_u32 s52, s52, {CAP}
  s_cmp_lt_u32 s52, s23
  s_cbranch_scc0 L_C
  s_waitcnt vmcnt(0)
  s_branch L_pass
L_C:''')
stamp(10)
a(f'''  v_lshlrev_b32 v3, 4, v0
  s_mul_i32 s21, s2, {NITEM*8}
  s_add_u32 s23, s21, 8192
  s_cmp_ge_u32 s20, 6
  s_cselect_b32 s23, 0x40000000, s23
  s_mov_b32 s22, {SPIN}
  buffer_load_dwordx4 v[40:43], v3, s[36:39], s21 offen sc1
  buffer_load_dwordx4 v[44:47], v3, s[36:39], s23 offen sc1
L_pr:
  s_waitcnt vmcnt(0)
  v_max3_u32 v2, v40, v41, v42
  v_max3_u32 v4, v44, v45, v46
  v_max_u32 v2, v2, v43
  v_max_u32 v4, v4, v47
  v_cmp_eq_u32 s[50:51], -1, v2
  v_cmp_eq_u32 s[52:53], -1, v4
  s_nop 1
  s_or_b64 s[54:55], s[50:51], s[52:53]
  s_cbranch_scc0 L_prok
  s_mov_b64 exec, s[50:51]
  s_cbranch_execz L_pr1
  buffer_load_dwordx4 v[40:43], v3, s[36:39], s21 offen sc1
L_pr1:
  s_mov_b64 exec, s[52:53]
  s_cbranch_execz L_pr2
  buffer_load_dwordx4 v[44:47], v3, s[36:39], s23 offen sc1
L_pr2:
  s_mov_b64 exec, -1
  s_sub_u32 s22, s22, 1
  s_cmp_lg_u32 s22, 0
  s_cbranch_scc1 L_pr
  s_waitcnt vmcnt(0)
L_prok:''')
stamp(11)
a(f'''  ds_write_b128 v3, v[40:43] offset:{RES}
  s_cmp_ge_u32 s20, 6
  s_cbranch_scc1 L_nores2
  ds_write_b128 v3, v[44:47] offset:{RES+8192}
L_nores2:''')
for i in range(4): a(f'  v_lshlrev_b32 v{14+i}, 3, v{14+i}')
a(f'''  s_waitcnt lgkmcnt(0)
  s_barrier
  s_cmp_eq_u32 s20, 7
  s_cbranch_scc1 L_nogather''')
for i in range(4): a(f'  ds_read_b64 v[{40+2*i}:{41+2*i}], v{14+i} offset:{RES}')
a(f'''  s_lshl_b32 s21, s20, 9
  s_add_u32 s21, s21, {PART}
  v_lshl_add_u32 v2, v1, 3, s21
  s_waitcnt lgkmcnt(2)
  v_pk_add_f32 v[40:41], v[40:41], v[42:43]
  s_waitcnt lgkmcnt(0)
  v_pk_add_f32 v[44:45], v[44:45], v[46:47]
  v_pk_add_f32 v[40:41], v[40:41], v[44:45]
  ds_write_b64 v2, v[40:41]
L_nogather:
  s_waitcnt lgkmcnt(0)
  s_barrier
  s_cmp_eq_u32 s20, 0
  s_cbranch_scc1 L_fin''')
stamp(12); stamp_flush(40)
a(f'''  s_endpgm
L_fin:
  v_lshlrev_b32 v2, 3, v1
  v_add_u32 v2, {PART}, v2''')
for w in range(7): a(f'  ds_read_b64 v[{40+2*w}:{41+2*w}], v2 offset:{512*w}')
a('''  s_lshl_b32 s21, s2, 7
  v_lshlrev_b32 v3, 1, v1
  s_mov_b32 s22, 0x0d800000             ; 2^-100
  s_mov_b32 s23, 0x71800000             ; 2^100''')
for w in range(1,7):
    a(f'''  s_waitcnt lgkmcnt({6-w})
  v_pk_add_f32 v[40:41], v[40:41], v[{40+2*w}:{41+2*w}]''')
a(f'''  v_rcp_f32 v42, v40
  v_cmp_le_f32 s[50:51], s22, v40
  v_cmp_ge_f32 s[52:53], s23, v40
  v_cmp_ge_f32 vcc, s23, |v41|
  v_mul_f32 v42, v42, v41
  s_and_b64 s[50:51], s[50:51], s[52:53]
  s_and_b64 s[50:51], s[50:51], vcc
  v_cvt_pk_bf16_f32 v42, v42, v42
  buffer_store_short v42, v3, s[40:43], s21 offen
  s_cmp_eq_u32 s2, 0
  s_cbranch_scc0 L_noep
  v_mov_b32 v9, 0
  s_mov_b64 exec, 1
  buffer_store_dword v8, v9, s[28:31], 0 offen sc1
  s_mov_b64 exec, -1
L_noep:
  s_not_b64 s[50:51], s[50:51]
  s_cbranch_scc1 L_slow''')
stamp(12); stamp_flush(50)
a('  s_endpgm')
Cb=4; AP0=20; AP1=28; AX=36; AQ0=44; AQ1=52; AC0=60; AC1=76; Q=92; D2=100; X0=104; X1=112
PB=PAR+2048; PH=PAR+2304; PP=PAR+2560
a(f'''L_T:
  s_cmp_ge_u32 s2, 250
  s_cbranch_scc0 L_Tgo
  s_barrier
  s_barrier
  s_barrier
  s_endpgm
L_Tgo:
  s_sub_u32 s21, s20, 8                 ; tw
  v_lshrrev_b32 v2, 4, v1
  v_xor_b32 v2, v2, v1
  v_and_b32 v2, 3, v2
  v_and_b32 v3, 60, v1
  v_or_b32 v2, v2, v3
  v_lshlrev_b32 v2, 4, v2
  s_lshl_b32 s22, s21, 13               ; tw*8KB
  s_add_u32 s23, s22, {TAB}
  s_mov_b32 m0, s23
  s_waitcnt lgkmcnt(0)''')
srd(a,24,6,64000)
for i in range(4): a(f'  buffer_load_dwordx4 v2, s[24:27], s22 offen offset:{1024*i} lds')
a(f'''  s_add_u32 s22, s22, 4096
  s_add_u32 s23, s23, 4096
  s_mov_b32 m0, s23
  s_cmp_lt_u32 s21, 4''')
for i in range(4): a(f'  buffer_load_dwordx4 v2, s[24:27], s22 offen offset:{1024*i} lds')
a(f'''  s_cbranch_scc0 L_Tnopar
  v_lshlrev_b32 v2, 4, v1
  v_lshlrev_b32 v3, 2, v1
  s_cmp_eq_u32 s21, 0
  s_cbranch_scc0 L_Tp1''')
srd(a,28,8,2048)
a(f'''  s_mov_b32 m0, {PAR}
  s_nop 0
  buffer_load_dwordx4 v2, s[28:31], 0 offen lds
  buffer_load_dwordx4 v2, s[28:31], 0 offen offset:1024 lds
  s_branch L_Tnopar
L_Tp1:
  s_cmp_eq_u32 s21, 1
  s_cbranch_scc0 L_Tp2''')
srd(a,28,10,64)
a(f'''  s_mov_b32 m0, {PB}
  s_nop 0
  buffer_load_dword v3, s[28:31], 0 offen lds
  s_branch L_Tnopar
L_Tp2:
  s_cmp_eq_u32 s21, 2
  s_cbranch_scc0 L_Tp3''')
srd(a,28,12,64)
a(f'''  s_mov_b32 m0, {PH}
  s_nop 0
  buffer_load_dword v3, s[28:31], 0 offen lds
  s_branch L_Tnopar
L_Tp3:''')
srd(a,28,14,64)
a(f'''  s_mov_b32 m0, {PP}
  s_nop 0
  buffer_load_dword v3, s[28:31], 0 offen lds
L_Tnopar:
  s_barrier
  v_lshrrev_b32 v2, 5, v1               ; hf
  v_and_b32 v3, 31, v1                  ; n
  s_and_b32 s22, s21, 1                 ; rp
  s_lshr_b32 s21, s21, 1                ; cq''')
for r in range(16): a(f'  v_mov_b32 v{AC0+r}, 0')
a(f'''  v_mov_b32 v0, {PAR}
  v_lshl_add_u32 v120, v2, 9, v0
  v_lshl_add_u32 v120, v3, 1, v120
  v_and_b32 v121, 0x13, v3
  v_and_b32 v122, 4, v3
  v_lshl_or_b32 v121, v122, 1, v121
  v_and_b32 v122, 8, v3
  v_lshrrev_b32 v122, 1, v122
  v_or_b32 v121, v121, v122             ; pi(m)
  v_lshlrev_b32 v121, 6, v121
  v_lshl_add_u32 v122, v2, 4, v0
  v_add_u32 v121, v121, v122
  v_lshl_add_u32 v123, v2, 3, v0
  s_lshl_b32 s23, s2, 2
  s_lshl_b32 s48, s22, 1
  s_add_u32 s23, s23, s48               ; v0
  s_lshl_b32 s48, s23, 6
  s_add_u32 s48, s48, {TAB}
  s_and_b32 s49, s2, 3
  v_xor_b32 v126, s49, v2
  v_lshl_add_u32 v126, v126, 4, s48
  v_xor_b32 v127, 32, v126
  v_bfe_u32 v124, v1, 3, 1
  v_lshlrev_b32 v124, 6, v124
  v_add_u32 v125, v127, v124
  v_add_u32 v124, v126, v124
  s_barrier
  v_bfe_u32 v0, v3, 2, 2
  v_xor_b32 v0, v0, v2
  v_lshlrev_b32 v0, 4, v0
  v_lshl_add_u32 v0, v3, 6, v0
  s_lshl_b32 s49, s21, 14
  s_add_u32 s49, s49, {TAB}
  v_add_u32 v118, s49, v0
  s_waitcnt vmcnt(0)
  s_barrier''')
stamp(5)
for ks in range(2):
    a(f'''  ds_read_b128 v[{Q+4*ks}:{Q+4*ks+3}], v121 offset:{32*ks}
  ds_read_b128 v[{AX+4*ks}:{AX+4*ks+3}], v122 offset:{2304+32*ks}''')
for ks in range(2):
    a(f'''  ds_read_b128 v[{AP0+4*ks}:{AP0+4*ks+3}], v{126+ks}
  ds_read_b128 v[{AP1+4*ks}:{AP1+4*ks+3}], v{126+ks} offset:64''')
a('  s_waitcnt lgkmcnt(4)')
a(f'''  v_mfma_f32_32x32x16_bf16 v[{Cb}:{Cb+15}], v[{Q}:{Q+3}], v[{AX}:{AX+3}], 0
  v_mfma_f32_32x32x16_bf16 v[{Cb}:{Cb+15}], v[{Q+4}:{Q+7}], v[{AX+4}:{AX+7}], v[{Cb}:{Cb+15}]''')
for r in range(8):
    ks,j=r>>3,r&7
    a(f'  ds_read_u16_d16_hi v{AC0+r}, v120 offset:{(16*ks+j)*64}')
a('  s_waitcnt lgkmcnt(4)')
for r in range(8,16):
    ks,j=r>>3,r&7
    a(f'  ds_read_u16_d16_hi v{AC0+r}, v120 offset:{(16*ks+j)*64}')
a(f'''  v_mov_b32 v120, v118
  v_xor_b32 v119, 32, v118
  s_waitcnt lgkmcnt(4)''')
for ks in range(2):
    a(f'''  ds_read_b128 v[{X0+4*ks}:{X0+4*ks+3}], v{124+ks}
  ds_read_b128 v[{AC1+8+4*ks}:{AC1+8+4*ks+3}], v122 offset:{2560+32*ks}''')
for i in range(4):
    a(f'''  ds_read_b64 v[{AC1+2*i}:{AC1+2*i+1}], v123 offset:{2048+16*i}''')
a(f'''  v_mov_b32 v125, v119
  v_mov_b32 v126, 0xffff0000
  s_waitcnt lgkmcnt(8)''')
for i in range(4):
    a(f'''  ds_read_b64 v[{AQ0+2*i}:{AQ0+2*i+1}], v123 offset:{2304+16*i}''')
def lanemask(f):
    m=0
    for l in range(64):
        if f(l): m|=1<<l
    return m
match=lambda l: ((l>>2)&1)==((l>>4)&1)
mu=lanemask(lambda l: match(l) and (l&3)==0)
mp=lanemask(lambda l: match(l) and (l&3)==1)
m0=lanemask(lambda l: match(l) and (l&3)==0 and ((l>>3)&1)==0)
m1=lanemask(lambda l: match(l) and (l&3)==0 and ((l>>3)&1)==1)
for sreg,vreg,m in ((50,116,mu),(52,117,mp),(54,118,m0),(56,119,m1)):
    a(f'''  s_mov_b32 s{sreg}, {m&0xffffffff:#x}
  s_mov_b32 s{sreg+1}, {m>>32:#x}
  v_cndmask_b32 v{vreg}, 0, -1, s[{sreg}:{sreg+1}]''')
for AP in (AP0,AP1):
    for r in range(8):
        a(f'''  v_lshlrev_b32 v2, 16, v{AP+r}
  v_and_b32 v0, v126, v{AP+r}
  v_mul_f32 v2, v2, v{AC0+2*r}
  v_mul_f32 v0, v0, v{AC0+2*r+1}
  v_cvt_pk_bf16_f32 v{AP+r}, v2, v0''')
a('  s_waitcnt lgkmcnt(0)')
for r in range(8):
    P=AC1+8+r
    a(f'''  v_and_b32 v{P}, v117, v{P}
  v_lshlrev_b32 v2, 16, v{P}
  v_and_b32 v0, v126, v{P}
  v_and_or_b32 v2, v{Cb+2*r}, v116, v2
  v_and_or_b32 v0, v{Cb+2*r+1}, v116, v0
  v_lshlrev_b32 v127, 16, v{X0+r}
  v_and_b32 v{X0+r}, v126, v{X0+r}
  v_mul_f32 v2, v2, v127
  v_mul_f32 v0, v0, v{X0+r}
  v_cvt_pk_bf16_f32 v{AX+r}, v2, v0''')
a(f'''  ds_read_b128 v[{X0}:{X0+3}], v120
  ds_read_b128 v[{X0+4}:{X0+7}], v125
  v_mov_b32 v127, 0x7fff7fff''')
for r in range(8):
    a(f'''  v_lshlrev_b32 v{Cb+2*r}, 16, v{AC1+r}
  v_and_b32 v{Cb+2*r+1}, v126, v{AC1+r}
  v_and_b32 v{AC1+r}, v127, v{AC1+r}
  v_and_b32 v{AQ1+r}, v119, v{AQ0+r}
  v_and_b32 v{AQ0+r}, v118, v{AQ0+r}''')
def m16(A,B,C):
    a(f'  v_mfma_f32_16x16x32_bf16 v[{D2}:{D2+3}], v[{A}:{A+3}], v[{B}:{B+3}], {C}')
DD=f'v[{D2}:{D2+3}]'
a('  s_nop 1')
m16(AQ0,AC1,'0'); m16(AQ0+4,AC1+4,DD); m16(AQ1,AC1,DD); m16(AQ1+4,AC1+4,DD)
a(f'''  v_lshrrev_b32 v2, 5, v1
  s_lshl_b32 s22, s22, 1
  v_add_u32 v2, s22, v2
  v_lshlrev_b32 v2, 13, v2
  v_lshl_add_u32 v121, v3, 3, v2
  s_lshl_b32 s21, s21, 11
  v_add_u32 v121, s21, v121
  v_mov_b32 v122, 0x3f38aa3b            ; log2(e)/2
  s_mov_b32 s23, 4
  s_nop 0
  v_mul_f32 v123, v{D2}, v122
  v_sub_f32 v123, 0, v123''')
stamp(6)
def body(X,XN,off,xoff):
    a(f'''  s_waitcnt lgkmcnt(0)
  ds_read_b128 v[{XN}:{XN+3}], v120 offset:{xoff}
  ds_read_b128 v[{XN+4}:{XN+7}], v125 offset:{xoff}''')
    m16(AX,X,'0')
    a(f'''  v_mfma_f32_32x32x16_bf16 v[{AC0}:{AC0+15}], v[{AP0}:{AP0+3}], v[{X}:{X+3}], v[{Cb}:{Cb+15}]
  v_mfma_f32_32x32x16_bf16 v[{AC0}:{AC0+15}], v[{AP0+4}:{AP0+7}], v[{X+4}:{X+7}], v[{AC0}:{AC0+15}]''')
    m16(AX+4,X+4,DD)
    a(f'''  v_mfma_f32_32x32x16_bf16 v[{AC1}:{AC1+15}], v[{AP1}:{AP1+3}], v[{X}:{X+3}], v[{Cb}:{Cb+15}]
  v_mfma_f32_32x32x16_bf16 v[{AC1}:{AC1+15}], v[{AP1+4}:{AP1+7}], v[{X+4}:{X+7}], v[{AC1}:{AC1+15}]
  s_nop 8''')
    for r in range(8): a(f'  v_cvt_pk_bf16_f32 v{Q+r}, |v{AC0+2*r}|, |v{AC0+2*r+1}|')
    a('  s_nop 1')
    m16(AQ0,Q,DD); m16(AQ0+4,Q+4,DD)
    for r in range(8): a(f'  v_cvt_pk_bf16_f32 v{Q+r}, |v{AC1+2*r}|, |v{AC1+2*r+1}|')
    a('  s_nop 1')
    m16(AQ1,Q,DD); m16(AQ1+4,Q+4,DD)
    a(f'''  s_nop 7
  v_fma_f32 v126, v{D2}, v122, v123
  v_exp_f32 v126, v126
  s_nop 0
  v_mul_f32 v127, v126, v{D2+1}
  ds_write_b64 v121, v[126:127] offset:{off}''')
a('L_Tloop:')
body(X0,X1,0,2048); body(X1,X0,256,4096)
a(f'''  v_add_u32 v121, 512, v121
  v_add_u32 v120, 4096, v120
  v_add_u32 v125, 4096, v125
  s_sub_u32 s23, s23, 1
  s_cmp_lg_u32 s23, 0
  s_cbranch_scc1 L_Tloop
  s_cmp_eq_u32 s21, {3<<11}
  s_cbranch_scc0 L_Tnoz
  v_mov_b32 v126, 0
  v_mov_b32 v127, 0
  v_subrev_u32 v121, 256, v121
  v_cmp_le_u32 vcc, 8, v3
  s_and_saveexec_b64 s[50:51], vcc
  ds_write_b64 v121, v[126:127]
  s_mov_b64 exec, s[50:51]
L_Tnoz:
  s_waitcnt lgkmcnt(0)''')
stamp(9)
a('  s_barrier')
stamp_flush(4)
a('  s_endpgm')
a('L_slow:')
slow_wave(a,'S')
a('L_end:\n  s_endpgm')
a(kd(N,128))
open(sys.argv[1],'w').write(a.text())
print('LDS',LDSZ,'mode',MODE)
```

```python
from common import *
import sys
STAMP = len(sys.argv)>2 and sys.argv[2]=='stamp'
N='standalone__factorization_afm__recsys_kernel'
SLICE=0; STAGE=32768; CNT=61440; DONE=62464; EXT=62592; OFFP=73856; MAP=82048; CAP=320
RES=MAP+8*CAP*4
PART=RES+14336
LDSZ=PART+8*512
NITEM=1792
WS_DESC=4096; WS_ITEMS=1<<20; WS_RES=16<<20; WS_STAMP=128<<20
SPIN=200000
a=Asm()
def stamp(k):
    if STAMP: a(f'  s_memrealtime s[{64+2*k}:{65+2*k}]')
def stamp_init():
    if STAMP:
        for k in range(16): a(f'  s_mov_b32 s{64+2*k}, 0')
def stamp_flush(tmp):
    if STAMP:
        a('  s_waitcnt lgkmcnt(0)\n  s_mov_b64 exec, -1')
        a(f'''  s_add_u32 s44, s18, {WS_STAMP}
  s_addc_u32 s45, s19, 0
  s_and_b32 s45, s45, 0xffff
  s_mov_b32 s46, {256*16*128}
  s_mov_b32 s47, 0x00020000
  v_mov_b32 v{tmp}, 0''')
        for k in range(16): a(f'  v_writelane_b32 v{tmp}, s{64+2*k}, {k}')
        a(f'''  s_lshl_b32 s48, s2, 4
  s_add_u32 s48, s48, s20
  s_lshl_b32 s48, s48, 7
  v_mbcnt_lo_u32_b32 v{tmp+1}, -1, 0
  v_mbcnt_hi_u32_b32 v{tmp+1}, -1, v{tmp+1}
  v_lshlrev_b32 v{tmp+1}, 2, v{tmp+1}
  s_mov_b64 exec, 0xffff
  buffer_store_dword v{tmp}, v{tmp+1}, s[44:47], s48 offen
  s_mov_b64 exec, -1''')
def srd_off(d, ptr, off, nbytes):
    a(f'''  s_add_u32 s{d}, s{ptr}, {off}
  s_addc_u32 s{d+1}, s{ptr+1}, 0
  s_and_b32 s{d+1}, s{d+1}, 0xffff
  s_mov_b32 s{d+2}, {nbytes}
  s_mov_b32 s{d+3}, 0x00020000''')
def scan(v, full=True):
    for sh in (1,2,4,8):
        a(f'  s_nop 1\n  v_add_u32_dpp v{v}, v{v}, v{v} row_shr:{sh} row_mask:0xf bank_mask:0xf')
    a(f'  s_nop 1\n  v_add_u32_dpp v{v}, v{v}, v{v} row_bcast:15 row_mask:0xa bank_mask:0xf')
    if full: a(f'  s_nop 1\n  v_add_u32_dpp v{v}, v{v}, v{v} row_bcast:31 row_mask:0xc bank_mask:0xf')

a(HDR+f'; @launch grid=(256,1,1) block=(1024,1,1) lds={LDSZ}\n.amdgcn_target "amdgcn-amd-amdhsa--gfx950"')
a(kstart(N))
a('''  s_cmp_ge_u32 s2, 256
  s_cbranch_scc1 L_end''')
stamp_init(); stamp(0)
a('''  s_load_dwordx4 s[4:7], s[0:1], 0
  s_load_dwordx2 s[18:19], s[0:1], 80
  s_load_dwordx4 s[8:11], s[0:1], 32
  s_load_dwordx4 s[12:15], s[0:1], 48
  s_load_dwordx2 s[16:17], s[0:1], 64
  v_lshrrev_b32 v2, 6, v0
  v_and_b32 v1, 63, v0
  v_readfirstlane_b32 s20, v2
  s_nop 3
  s_cmp_ge_u32 s20, 8
  s_cbranch_scc1 L_T''')
a('''  s_setprio 2
  v_lshlrev_b32 v3, 4, v0               ; t*16
  s_mul_i32 s21, s2, 6656
  s_waitcnt lgkmcnt(0)''')
stamp(1)
a('''  s_add_u32 s24, s4, s21
  s_addc_u32 s25, s5, 0
  s_and_b32 s25, s25, 0xffff
  s_mov_b32 s26, 6656
  s_mov_b32 s27, 0x00020000
  buffer_load_dwordx4 v[4:7], v3, s[24:27], 0 offen''')
srd_off(28,18,0,WS_DESC+256*2048)
a('''  v_mov_b32 v9, 0
  buffer_load_dword v8, v9, s[28:31], 0 offen sc1''')
srd_off(32,18,WS_ITEMS,256*NITEM*16)
srd_off(36,18,WS_RES,256*NITEM*8)
srd(a,40,16,32768)
a(f'''  s_mul_i32 s22, s2, {NITEM*8}
  v_mov_b32 v10, -1
  v_mov_b32 v11, -1
  v_mov_b32 v12, -1
  v_mov_b32 v13, -1
  buffer_store_dwordx4 v[10:13], v3, s[36:39], s22 offen sc1
  s_cmp_ge_u32 s20, 6
  s_cbranch_scc1 L_nomark2
  s_add_u32 s23, s22, 8192
  buffer_store_dwordx4 v[10:13], v3, s[36:39], s23 offen sc1
  s_branch L_mark2done
L_nomark2:
  buffer_store_dwordx4 v[10:13], v3, s[36:39], s22 offen sc1
L_mark2done:''')
a(f'''  v_lshlrev_b32 v22, 2, v0
  v_mov_b32 v30, {EXT}''')
for k in range(4):
    a(f'''  v_add_u32 v23, {k}, v22
  v_mul_u32_u24 v24, 2521, v23
  v_lshrrev_b32 v24, 16, v24            ; row
  v_mul_u32_u24 v25, 26, v24
  v_sub_u32 v25, v23, v25               ; f
  v_mul_u32_u24 v24, 176, v24
  v_add_u32 v24, v30, v24
  v_subrev_u32 v26, 1, v25
  v_min_u32 v27, 40, v26                ; slot
  v_lshl_add_u32 v{14+k}, v27, 2, v24
  v_add_u32 v27, 25, v26
  v_cmp_gt_u32 vcc, 15, v26
  v_mov_b32 v28, 43
  s_nop 0
  v_cndmask_b32 v27, v28, v27, vcc
  v_lshl_add_u32 v{18+k}, v27, 2, v24''')
a(f'''  s_cmp_eq_u32 s20, 7
  s_cbranch_scc0 L_extw
  v_mov_b32 v22, 0
  v_mov_b32 v23, 0
  v_mov_b32 v24, 0
  v_mov_b32 v25, 0
  v_lshlrev_b32 v26, 4, v1
  ds_write_b128 v26, v[22:25] offset:{CNT}
  ds_write_b32 v22, v22 offset:{DONE}
  s_waitcnt vmcnt(2)
  s_branch L_extdone
L_extw:
  v_cmp_gt_u32 vcc, 416, v0
  s_and_saveexec_b64 s[50:51], vcc
  s_waitcnt vmcnt(2)''')
stamp(2)
for k in range(4):
    a(f'''  ds_write_b32 v{14+k}, v{4+k}
  ds_write_b32 v{18+k}, v{4+k}''')
a('''  s_mov_b64 exec, s[50:51]
L_extdone:
  v_add_u32 v8, 1, v8
  s_waitcnt lgkmcnt(0)
  s_barrier''')
stamp(3)
a(f'''  v_mul_u32_u24 v2, 176, v1
  v_mov_b32 v3, 1
  s_cmp_ge_u32 s20, 6
  s_cbranch_scc1 L_w67
  s_lshl_b32 s21, s20, 4
  v_add_u32 v2, s21, v2''')
E=lambda k:58+k
for q in range(4):
    a(f'  ds_read_b128 v[{E(4*q)}:{E(4*q+3)}], v2 offset:{EXT+16*q}')
a('  s_waitcnt lgkmcnt(3)')
for i in range(4):
    a(f'''  v_and_b32 v{4+i}, 0x3fc, v{E(i)}
  ds_add_rtn_u32 v{14+i}, v{4+i}, v3 offset:{CNT}''')
a('  s_waitcnt lgkmcnt(4)')
def pack(dst,f0,f1,f2,c=None):
    a(f'''  v_lshl_or_b32 v{dst}, {f1}, 10, {f0}
  v_lshl_or_b32 v{dst}, {f2}, 20, v{dst}''')
    if c is not None: a(f'  v_lshl_or_b32 v{dst}, {c}, 30, v{dst}')
    a(f'  v_alignbit_b32 v{dst}, v{dst}, v{dst}, 29')
for i in range(4):
    for m in range(4):
        pack(40+4*i+m, f'v{E(i+1+3*m)}', f'v{E(i+2+3*m)}', f'v{E(i+3+3*m)}', f'v{E(i)}' if m==0 else None)
a(f'''  s_branch L_packed
L_w67:
  s_cmp_eq_u32 s20, 7
  s_cbranch_scc1 L_packed''')
for q in range(7):
    a(f'  ds_read_b128 v[{E(4*q)}:{E(4*q+3)}], v2 offset:{EXT+16*q}')
a(f'''  ds_read_b32 v86, v2 offset:{EXT+160}
  s_waitcnt lgkmcnt(0)
  v_and_b32 v4, 0x3fc, v{E(24)}
  v_and_b32 v5, 0x3fc, v86
  v_mov_b32 v6, v5
  v_mov_b32 v7, v5''')
for i in range(4):
    a(f'  ds_add_rtn_u32 v{14+i}, v{4+i}, v3 offset:{CNT}')
a('  v_mov_b32 v87, 0x3ff')
for m in range(4):
    pack(40+m, f'v{E(3*m)}', f'v{E(3*m+1)}', f'v{E(3*m+2)}', f'v{E(24)}' if m==0 else None)
for m in range(4):
    pack(44+m, f'v{E(3*m)}', f'v{E(3*m+1)}', f'v{E(3*m+2)}', 'v86' if m==0 else None)
for m in range(4):
    pack(48+m, f'v{E(12+3*m)}', f'v{E(13+3*m)}', f'v{E(14+3*m)}', 'v86' if m==0 else None)
pack(52, f'v{E(24)}', 'v87', 'v87', 'v86')
pack(53, 'v87','v87','v87')
a('''  v_mov_b32 v54, v53
  v_mov_b32 v55, v53
L_packed:
  s_waitcnt lgkmcnt(0)
  s_barrier''')
stamp(4)
a(f'''  v_lshlrev_b32 v2, 4, v1
  ds_read_b128 v[20:23], v2 offset:{CNT}
  s_lshl_b32 s21, s20, 10
  s_add_u32 s21, s21, {OFFP}
  v_add_u32 v3, s21, v2
  s_waitcnt lgkmcnt(0)
  v_add_u32 v28, v20, v21
  v_add3_u32 v28, v28, v22, v23
  v_mov_b32 v29, v28''')
scan(29)
a(f'''  v_sub_u32 v24, v29, v28
  v_add_u32 v25, v24, v20
  v_add_u32 v26, v25, v21
  v_add_u32 v27, v26, v22
  s_cmp_eq_u32 s20, 7
  s_cbranch_scc1 L_staged
  ds_write_b128 v3, v[24:27]''')
for i in range(4): a(f'  v_add_u32 v{4+i}, s21, v{4+i}')
a('  s_waitcnt lgkmcnt(0)')
for i in range(4): a(f'  ds_read_b32 v{4+i}, v{4+i}')
for i in range(4):
    a(f'''  s_waitcnt lgkmcnt({3 if i==0 else 3})
  v_add_u32 v{14+i}, v{14+i}, v{4+i}      ; pos
  v_lshlrev_b32 v{4+i}, 4, v{14+i}
  ds_write_b128 v{4+i}, v[{40+4*i}:{43+4*i}] offset:{STAGE}''')
a('''L_staged:
  s_waitcnt lgkmcnt(0)
  s_barrier''')
stamp(5)
a(f'''  v_lshlrev_b32 v3, 4, v0
  s_mul_i32 s21, s2, {NITEM*16}''')
for j in range(3): a(f'  ds_read_b128 v[{40+4*j}:{43+4*j}], v3 offset:{STAGE+8192*j}')
a(f'''  s_cmp_ge_u32 s20, 4
  s_cbranch_scc1 L_co3
  v_add_u32 v2, {3*8192}, v3
  ds_read_b128 v[52:55], v2 offset:{STAGE}
  s_waitcnt lgkmcnt(0)
  buffer_store_dwordx4 v[52:55], v2, s[32:35], s21 offen sc1
L_co3:
  s_add_u32 s22, s21, 8192
  s_add_u32 s23, s21, 16384
  s_waitcnt lgkmcnt(0)
  buffer_store_dwordx4 v[40:43], v3, s[32:35], s21 offen sc1
  buffer_store_dwordx4 v[44:47], v3, s[32:35], s22 offen sc1
  buffer_store_dwordx4 v[48:51], v3, s[32:35], s23 offen sc1''')
for k in range(4):
    a(f'''  v_lshl_or_b32 v{56+2*k}, v{20+k}, 16, v{24+k}
  v_mov_b32 v{57+2*k}, v8''')
a(f'''  v_mov_b32 v2, 0
  v_mov_b32 v3, 1
  v_lshlrev_b32 v4, 5, v1
  s_lshl_b32 s21, s2, 11
  s_add_u32 s21, s21, {WS_DESC}
  s_mov_b64 exec, 1
  s_waitcnt vmcnt(0)
  ds_add_rtn_u32 v5, v2, v3 offset:{DONE}
  s_waitcnt lgkmcnt(0)
  v_readfirstlane_b32 s22, v5
  s_mov_b64 exec, -1
  s_cmp_eq_u32 s22, 7
  s_cbranch_scc0 L_nodesc
  buffer_store_dwordx4 v[56:59], v4, s[28:31], s21 offen sc1
  buffer_store_dwordx4 v[60:63], v4, s[28:31], s21 offen offset:16 sc1
L_nodesc:''')
stamp(6)
a(f'''  s_cmp_ge_u32 s2, 250
  s_cbranch_scc1 L_C
  v_and_b32 v2, 31, v1
  s_lshl_b32 s21, s20, 5
  v_add_u32 v2, s21, v2                 ; src
  v_lshlrev_b32 v3, 11, v2
  s_lshl_b32 s21, s2, 3
  s_add_u32 s21, s21, {WS_DESC}
  s_mov_b32 s22, {SPIN}
L_pd:
  buffer_load_dwordx2 v[4:5], v3, s[28:31], s21 offen sc1
  s_waitcnt vmcnt(0)
  v_cmp_ne_u32 vcc, v5, v8
  s_cbranch_vccz L_pdok
  s_sub_u32 s22, s22, 1
  s_cmp_lg_u32 s22, 0
  s_cbranch_scc1 L_pd
  v_mov_b32 v4, 0
L_pdok:''')
stamp(7)
a(f'''  v_lshrrev_b32 v6, 16, v4              ; count
  v_and_b32 v4, 0xffff, v4              ; start
  v_mov_b32 v7, v6
  v_mul_u32_u24 v2, {NITEM}, v2''')
scan(7, full=False)
a(f'''  v_add_u32 v4, v2, v4                  ; g0
  v_readlane_b32 s23, v7, 31            ; N_w
  v_sub_u32 v7, v7, v6                  ; prefix
  s_mul_i32 s21, s20, {CAP*4}
  s_add_u32 s21, s21, {MAP}
  s_mov_b32 s52, 0                      ; base
  s_mov_b32 s53, 0
  v_mov_b32 v31, 0x1ff8
L_pass:
  v_lshrrev_b32 v9, 5, v1               ; k
  v_subrev_u32 v10, s52, v7
  v_add_u32 v10, v10, v9
  v_add_u32 v11, v4, v9                 ; g0+k
  v_mov_b32 v12, {CAP}
L_exp:
  v_cmpx_lt_u32 vcc, v9, v6
  s_cbranch_execz L_expdone
  v_lshl_add_u32 v13, v10, 2, s21
  v_cmpx_lt_u32 vcc, v10, v12
  ds_write_b32 v13, v11
  s_mov_b64 exec, -1
  v_add_u32 v9, 2, v9
  v_add_u32 v10, 2, v10
  v_add_u32 v11, 2, v11
  s_branch L_exp
L_expdone:
  s_mov_b64 exec, -1
  v_lshl_add_u32 v13, v1, 2, s21
  s_sub_u32 s54, s23, s52               ; remaining
  v_mov_b32 v12, 0x1000000
  s_waitcnt lgkmcnt(0)''')
G=lambda j:32+j
I=lambda j:40+4*j
for j in range(5): a(f'  ds_read_b32 v{G(j)}, v13 offset:{256*j}')
for j in range(5):
    a(f'''  v_add_u32 v9, {64*j}, v1
  v_cmp_gt_u32 vcc, s54, v9
  s_waitcnt lgkmcnt({4-j})
  s_nop 0
  v_cndmask_b32 v{G(j)}, v12, v{G(j)}, vcc
  v_lshlrev_b32 v9, 4, v{G(j)}
  buffer_load_dwordx4 v[{I(j)}:{I(j)+3}], v9, s[32:35], 0 offen sc1
  v_lshlrev_b32 v{G(j)}, 3, v{G(j)}''')
stamp(8)
a('''  s_cmp_lg_u32 s53, 0
  s_cbranch_scc1 L_nob4
  s_barrier
  s_mov_b32 s53, 1
L_nob4:''')
stamp(9)
AD=60; DT=72
for j in range(5):
    if j>0:
        a(f'''  s_cmp_le_u32 s54, {64*j}
  s_cbranch_scc1 L_stepsdone''')
    a(f'''  s_waitcnt vmcnt(4)
  v_and_b32 v30, 6, v{I(j)}
  v_lshlrev_b32 v30, 12, v30''')
    for m in range(4):
        w=I(j)+m
        a(f'''  v_and_or_b32 v{AD+3*m}, v{w}, v31, v30
  ds_read_b64 v[{DT+6*m}:{DT+6*m+1}], v{AD+3*m}
  v_alignbit_b32 v{AD+3*m+1}, v{w}, v{w}, 10
  v_alignbit_b32 v{AD+3*m+2}, v{w}, v{w}, 20
  v_and_or_b32 v{AD+3*m+1}, v{AD+3*m+1}, v31, v30
  v_and_or_b32 v{AD+3*m+2}, v{AD+3*m+2}, v31, v30
  ds_read_b64 v[{DT+6*m+2}:{DT+6*m+3}], v{AD+3*m+1}
  ds_read_b64 v[{DT+6*m+4}:{DT+6*m+5}], v{AD+3*m+2}''')
    for r in range(1,12):
        a(f'''  s_waitcnt lgkmcnt({11-r})
  v_pk_add_f32 v[{DT}:{DT+1}], v[{DT}:{DT+1}], v[{DT+2*r}:{DT+2*r+1}]''')
    a(f'''  v_min_u32 v{DT}, -2, v{DT}
  v_min_u32 v{DT+1}, -2, v{DT+1}
  buffer_store_dwordx2 v[{DT}:{DT+1}], v{G(j)}, s[36:39], 0 offen sc1''')
a(f'''L_stepsdone:
  s_add_u32 s52, s52, {CAP}
  s_cmp_lt_u32 s52, s23
  s_cbranch_scc0 L_C
  s_waitcnt vmcnt(0)
  s_branch L_pass
L_C:''')
stamp(10)
a(f'''  v_lshlrev_b32 v3, 4, v0
  s_mul_i32 s21, s2, {NITEM*8}
  s_add_u32 s23, s21, 8192
  s_cmp_ge_u32 s20, 6
  s_cselect_b32 s23, s21, s23
  s_mov_b32 s22, {SPIN}
L_pr:
  buffer_load_dwordx4 v[40:43], v3, s[36:39], s21 offen sc1
  buffer_load_dwordx4 v[44:47], v3, s[36:39], s23 offen sc1
  s_waitcnt vmcnt(0)
  v_max3_u32 v2, v40, v41, v42
  v_max3_u32 v2, v2, v43, v44
  v_max3_u32 v2, v2, v45, v46
  v_max_u32 v2, v2, v47
  v_cmp_eq_u32 vcc, -1, v2
  s_cbranch_vccz L_prok
  s_sub_u32 s22, s22, 1
  s_cmp_lg_u32 s22, 0
  s_cbranch_scc1 L_pr
L_prok:''')
stamp(11)
a(f'''  v_add_u32 v3, {RES}, v3
  ds_write_b128 v3, v[40:43]
  s_cmp_ge_u32 s20, 6
  s_cbranch_scc1 L_nores2
  ds_write_b128 v3, v[44:47] offset:8192
L_nores2:
  v_mov_b32 v2, {RES}''')
for i in range(4): a(f'  v_lshl_add_u32 v{14+i}, v{14+i}, 3, v2')
a(f'''  s_waitcnt lgkmcnt(0)
  s_barrier
  s_cmp_eq_u32 s20, 7
  s_cbranch_scc1 L_nogather''')
for i in range(4): a(f'  ds_read_b64 v[{40+2*i}:{41+2*i}], v{14+i}')
a(f'''  s_lshl_b32 s21, s20, 9
  s_add_u32 s21, s21, {PART}
  v_lshl_add_u32 v2, v1, 3, s21
  s_waitcnt lgkmcnt(2)
  v_pk_add_f32 v[40:41], v[40:41], v[42:43]
  s_waitcnt lgkmcnt(0)
  v_pk_add_f32 v[44:45], v[44:45], v[46:47]
  v_pk_add_f32 v[40:41], v[40:41], v[44:45]
  ds_write_b64 v2, v[40:41]
L_nogather:
  s_waitcnt lgkmcnt(0)
  s_barrier
  s_cmp_eq_u32 s20, 0
  s_cbranch_scc1 L_fin''')
stamp(12); stamp_flush(40)
a(f'''  s_endpgm
L_fin:
  v_lshlrev_b32 v2, 3, v1
  v_add_u32 v2, {PART}, v2''')
for w in range(7): a(f'  ds_read_b64 v[{40+2*w}:{41+2*w}], v2 offset:{512*w}')
a('''  s_lshl_b32 s21, s2, 7
  v_lshlrev_b32 v3, 1, v1
  s_mov_b32 s22, 0x0d800000             ; 2^-100
  s_mov_b32 s23, 0x71800000             ; 2^100''')
for w in range(1,7):
    a(f'''  s_waitcnt lgkmcnt({6-w})
  v_pk_add_f32 v[40:41], v[40:41], v[{40+2*w}:{41+2*w}]''')
a(f'''  v_rcp_f32 v42, v40
  v_cmp_le_f32 s[50:51], s22, v40
  v_cmp_ge_f32 s[52:53], s23, v40
  v_cmp_ge_f32 vcc, s23, |v41|
  v_mul_f32 v42, v42, v41
  s_and_b64 s[50:51], s[50:51], s[52:53]
  s_and_b64 s[50:51], s[50:51], vcc
  v_cvt_pk_bf16_f32 v42, v42, v42
  buffer_store_short v42, v3, s[40:43], s21 offen
  s_cmp_eq_u32 s2, 0
  s_cbranch_scc0 L_noep
  v_mov_b32 v9, 0
  s_mov_b64 exec, 1
  buffer_store_dword v8, v9, s[28:31], 0 offen sc1
  s_mov_b64 exec, -1
L_noep:
  s_not_b64 s[50:51], s[50:51]
  s_cbranch_scc1 L_slow''')
stamp(12); stamp_flush(50)
a('  s_endpgm')
Cb=4; AP0=20; AP1=28; AX=36; AQ0=44; AQ1=52; AC0=60; AC1=76; Q=92; D2=100; X0=104; X1=112
a(f'''L_T:
  s_cmp_ge_u32 s2, 250
  s_cbranch_scc0 L_Tgo
  s_barrier
  s_barrier
  s_barrier
  s_endpgm
L_Tgo:
  v_lshrrev_b32 v2, 5, v1               ; hf
  v_and_b32 v3, 31, v1                  ; n
  s_sub_u32 s21, s20, 8
  s_and_b32 s22, s21, 1                 ; rp
  s_lshr_b32 s21, s21, 1                ; cq''')
for r in range(16): a(f'  v_mov_b32 v{AC0+r}, 0')
a(f'''  v_lshlrev_b32 v120, 9, v2             ; hf*512
  v_lshl_add_u32 v120, v3, 1, v120
  v_and_b32 v121, 0x13, v3
  v_and_b32 v122, 4, v3
  v_lshl_or_b32 v121, v122, 1, v121
  v_and_b32 v122, 8, v3
  v_lshrrev_b32 v122, 1, v122
  v_or_b32 v121, v121, v122             ; pi(m)
  v_lshlrev_b32 v121, 6, v121
  v_lshlrev_b32 v122, 4, v2             ; hf*16
  v_add_u32 v121, v121, v122
  v_lshlrev_b32 v123, 3, v2             ; hf*8
  s_lshl_b32 s23, s2, 2
  s_lshl_b32 s48, s22, 1
  s_add_u32 s23, s23, s48               ; v0
  s_lshl_b32 s48, s23, 6                ; v0*64
  v_bfe_u32 v124, v1, 3, 1
  v_lshl_add_u32 v124, v124, 6, v122
  v_lshl_add_u32 v125, v3, 6, v122      ; X offset
  s_lshl_b32 s49, s21, 14
  s_waitcnt lgkmcnt(0)''')
srd(a,24,6,64000); srd(a,28,8,2048); srd(a,32,10,64); srd(a,36,12,64); srd(a,40,14,64)
for ks in range(2):
    a(f'''  buffer_load_dwordx4 v[{Q+4*ks}:{Q+4*ks+3}], v121, s[28:31], 0 offen offset:{32*ks}
  buffer_load_dwordx4 v[{AX+4*ks}:{AX+4*ks+3}], v122, s[36:39], 0 offen offset:{32*ks}
  buffer_load_dwordx4 v[{AP0+4*ks}:{AP0+4*ks+3}], v122, s[24:27], s48 offen offset:{32*ks}
  buffer_load_dwordx4 v[{AP1+4*ks}:{AP1+4*ks+3}], v122, s[24:27], s48 offen offset:{64+32*ks}
  buffer_load_dwordx4 v[{X1+4*ks}:{X1+4*ks+3}], v124, s[24:27], s48 offen offset:{32*ks}
  buffer_load_dwordx4 v[{AC1+8+4*ks}:{AC1+8+4*ks+3}], v122, s[40:43], 0 offen offset:{32*ks}''')
for r in range(16):
    ks,j=r>>3,r&7
    a(f'  buffer_load_short_d16_hi v{AC0+r}, v120, s[28:31], 0 offen offset:{(16*ks+j)*64}')
for i in range(4):
    a(f'''  buffer_load_dwordx2 v[{AQ0+2*i}:{AQ0+2*i+1}], v123, s[36:39], 0 offen offset:{16*i}
  buffer_load_dwordx2 v[{AC1+2*i}:{AC1+2*i+1}], v123, s[32:35], 0 offen offset:{16*i}''')
a(f'''  buffer_load_dwordx4 v[{X0}:{X0+3}], v125, s[24:27], s49 offen
  buffer_load_dwordx4 v[{X0+4}:{X0+7}], v125, s[24:27], s49 offen offset:32''')
def lanemask(f):
    m=0
    for l in range(64):
        if f(l): m|=1<<l
    return m
match=lambda l: ((l>>2)&1)==((l>>4)&1)
mu=lanemask(lambda l: match(l) and (l&3)==0)
mp=lanemask(lambda l: match(l) and (l&3)==1)
m0=lanemask(lambda l: match(l) and (l&3)==0 and ((l>>3)&1)==0)
m1=lanemask(lambda l: match(l) and (l&3)==0 and ((l>>3)&1)==1)
for sreg,vreg,m in ((50,120,mu),(52,121,mp),(54,123,m0),(56,124,m1)):
    a(f'''  s_mov_b32 s{sreg}, {m&0xffffffff:#x}
  s_mov_b32 s{sreg+1}, {m>>32:#x}
  v_cndmask_b32 v{vreg}, 0, -1, s[{sreg}:{sreg+1}]''')
a(f'''  v_mov_b32 v126, 0xffff0000
  s_barrier
  s_barrier
  s_barrier''')
stamp(5)
a(f'''  s_waitcnt vmcnt(2)
  v_mfma_f32_32x32x16_bf16 v[{Cb}:{Cb+15}], v[{Q}:{Q+3}], v[{AX}:{AX+3}], 0
  v_mfma_f32_32x32x16_bf16 v[{Cb}:{Cb+15}], v[{Q+4}:{Q+7}], v[{AX+4}:{AX+7}], v[{Cb}:{Cb+15}]''')
for AP in (AP0,AP1):
    for r in range(8):
        a(f'''  v_lshlrev_b32 v2, 16, v{AP+r}
  v_and_b32 v0, v126, v{AP+r}
  v_mul_f32 v2, v2, v{AC0+2*r}
  v_mul_f32 v0, v0, v{AC0+2*r+1}
  v_cvt_pk_bf16_f32 v{AP+r}, v2, v0''')
for r in range(8):
    P=AC1+8+r
    a(f'''  v_and_b32 v{P}, v121, v{P}
  v_lshlrev_b32 v2, 16, v{P}
  v_and_b32 v0, v126, v{P}
  v_and_or_b32 v2, v{Cb+2*r}, v120, v2
  v_and_or_b32 v0, v{Cb+2*r+1}, v120, v0
  v_lshlrev_b32 v127, 16, v{X1+r}
  v_and_b32 v{X1+r}, v126, v{X1+r}
  v_mul_f32 v2, v2, v127
  v_mul_f32 v0, v0, v{X1+r}
  v_cvt_pk_bf16_f32 v{AX+r}, v2, v0''')
a('  v_mov_b32 v127, 0x7fff7fff')
for r in range(8):
    a(f'''  v_lshlrev_b32 v{Cb+2*r}, 16, v{AC1+r}
  v_and_b32 v{Cb+2*r+1}, v126, v{AC1+r}
  v_and_b32 v{AC1+r}, v127, v{AC1+r}
  v_and_b32 v{AQ1+r}, v124, v{AQ0+r}
  v_and_b32 v{AQ0+r}, v123, v{AQ0+r}''')
def m16(A,B,C):
    a(f'  v_mfma_f32_16x16x32_bf16 v[{D2}:{D2+3}], v[{A}:{A+3}], v[{B}:{B+3}], {C}')
DD=f'v[{D2}:{D2+3}]'
a('  s_nop 1')
m16(AQ0,AC1,'0'); m16(AQ0+4,AC1+4,DD); m16(AQ1,AC1,DD); m16(AQ1+4,AC1+4,DD)
a(f'''  v_lshrrev_b32 v2, 5, v1
  s_lshl_b32 s22, s22, 1
  v_add_u32 v2, s22, v2
  v_lshlrev_b32 v2, 13, v2
  v_lshl_add_u32 v121, v3, 3, v2
  s_lshl_b32 s21, s21, 11
  v_add_u32 v121, s21, v121
  v_mov_b32 v122, 0x3f38aa3b            ; log2(e)/2
  s_mov_b32 s23, 4
  s_nop 0
  v_mul_f32 v123, v{D2}, v122
  v_sub_f32 v123, 0, v123''')
stamp(6)
def body(X,XN,off):
    a(f'''  s_add_u32 s49, s49, 2048
  buffer_load_dwordx4 v[{XN}:{XN+3}], v125, s[24:27], s49 offen
  buffer_load_dwordx4 v[{XN+4}:{XN+7}], v125, s[24:27], s49 offen offset:32
  s_waitcnt vmcnt(2)''')
    m16(AX,X,'0')
    a(f'''  v_mfma_f32_32x32x16_bf16 v[{AC0}:{AC0+15}], v[{AP0}:{AP0+3}], v[{X}:{X+3}], v[{Cb}:{Cb+15}]
  v_mfma_f32_32x32x16_bf16 v[{AC0}:{AC0+15}], v[{AP0+4}:{AP0+7}], v[{X+4}:{X+7}], v[{AC0}:{AC0+15}]''')
    m16(AX+4,X+4,DD)
    a(f'''  v_mfma_f32_32x32x16_bf16 v[{AC1}:{AC1+15}], v[{AP1}:{AP1+3}], v[{X}:{X+3}], v[{Cb}:{Cb+15}]
  v_mfma_f32_32x32x16_bf16 v[{AC1}:{AC1+15}], v[{AP1+4}:{AP1+7}], v[{X+4}:{X+7}], v[{AC1}:{AC1+15}]
  s_nop 8''')
    for r in range(8): a(f'  v_cvt_pk_bf16_f32 v{Q+r}, |v{AC0+2*r}|, |v{AC0+2*r+1}|')
    a('  s_nop 1')
    m16(AQ0,Q,DD); m16(AQ0+4,Q+4,DD)
    for r in range(8): a(f'  v_cvt_pk_bf16_f32 v{Q+r}, |v{AC1+2*r}|, |v{AC1+2*r+1}|')
    a('  s_nop 1')
    m16(AQ1,Q,DD); m16(AQ1+4,Q+4,DD)
    a(f'''  s_nop 7
  v_fma_f32 v126, v{D2}, v122, v123
  v_exp_f32 v126, v126
  s_nop 0
  v_mul_f32 v127, v126, v{D2+1}
  ds_write_b64 v121, v[126:127] offset:{off}''')
a('L_Tloop:')
body(X0,X1,0); body(X1,X0,256)
a(f'''  v_add_u32 v121, 512, v121
  s_sub_u32 s23, s23, 1
  s_cmp_lg_u32 s23, 0
  s_cbranch_scc1 L_Tloop
  s_cmp_eq_u32 s21, {3<<11}
  s_cbranch_scc0 L_Tnoz
  v_mov_b32 v126, 0
  v_mov_b32 v127, 0
  v_subrev_u32 v121, 256, v121
  v_cmp_le_u32 vcc, 8, v3
  s_and_saveexec_b64 s[50:51], vcc
  ds_write_b64 v121, v[126:127]
  s_mov_b64 exec, s[50:51]
L_Tnoz:
  s_waitcnt lgkmcnt(0) vmcnt(0)''')
stamp(9)
a('  s_barrier')
stamp_flush(4)
a('  s_endpgm')
a('L_slow:')
slow_wave(a,'S')
a('L_end:\n  s_endpgm')
a(kd(N,128))
open(sys.argv[1],'w').write(a.text())
print('LDS',LDSZ)
```

```python
from common import *
import sys
DBG = 'dbg' in sys.argv
STAMP = 'stamp' in sys.argv or DBG
MODE = 'a' if 'modea' in sys.argv else 'b'
N='standalone__factorization_afm__recsys_kernel'
SLICE=0; STAGE=32768; CNT=61440; DONE=62464; EXT=62592; OFFP=73856; PAR=82048; TAB=84992; CAP=320
MAP=EXT; RES=STAGE; PART=OFFP
LDSZ=TAB+65536
NITEM=1792
WS_FLAG=1024; WS_DESC=4096; WS_ITEMS=1<<20; WS_RES=16<<20; WS_STAMP=128<<20
SPIN=200000
a=Asm()
def stamp(k):
    if STAMP: a(f'  s_memrealtime s[{64+2*k}:{65+2*k}]')
def stamp_init():
    if STAMP:
        for k in range(16): a(f'  s_mov_b32 s{64+2*k}, 0')
def stamp_flush(tmp, T=False):
    if DBG:
        a('  s_waitcnt lgkmcnt(0)\n  s_mov_b64 exec, -1')
        a(f'''  s_load_dwordx2 s[44:45], s[0:1], 72
  s_waitcnt lgkmcnt(0)
  s_and_b32 s45, s45, 0xffff
  s_mov_b32 s46, 256
  s_mov_b32 s47, 0x00020000
  v_mov_b32 v{tmp}, 0
  s_not_b32 s48, s64''')
        mp = {12:6,13:9} if T else {1:0,2:2,3:3,4:5,5:6,6:7,7:8,8:9,9:10,10:11,11:12,14:14,15:4}
        if not T: a(f'  v_writelane_b32 v{tmp}, s48, 0')
        for w,k in mp.items(): a(f'  v_writelane_b32 v{tmp}, s{64+2*k}, {w}')
        a(f'''  v_mbcnt_lo_u32_b32 v{tmp+1}, -1, 0
  v_mbcnt_hi_u32_b32 v{tmp+1}, -1, v{tmp+1}
  v_lshlrev_b32 v{tmp+1}, 2, v{tmp+1}
  s_mov_b64 exec, 0xffff
  buffer_atomic_umax v{tmp}, v{tmp+1}, s[44:47], 0 offen
  s_mov_b64 exec, -1''')
        return
    if STAMP:
        a('  s_waitcnt lgkmcnt(0)\n  s_mov_b64 exec, -1')
        a(f'''  s_add_u32 s44, s18, {WS_STAMP}
  s_addc_u32 s45, s19, 0
  s_and_b32 s45, s45, 0xffff
  s_mov_b32 s46, {256*16*128}
  s_mov_b32 s47, 0x00020000
  v_mov_b32 v{tmp}, 0''')
        for k in range(16): a(f'  v_writelane_b32 v{tmp}, s{64+2*k}, {k}')
        a(f'''  s_lshl_b32 s48, s2, 4
  s_add_u32 s48, s48, s20
  s_lshl_b32 s48, s48, 7
  v_mbcnt_lo_u32_b32 v{tmp+1}, -1, 0
  v_mbcnt_hi_u32_b32 v{tmp+1}, -1, v{tmp+1}
  v_lshlrev_b32 v{tmp+1}, 2, v{tmp+1}
  s_mov_b64 exec, 0xffff
  buffer_store_dword v{tmp}, v{tmp+1}, s[44:47], s48 offen
  s_mov_b64 exec, -1''')
def srd_off(d, ptr, off, nbytes):
    a(f'''  s_add_u32 s{d}, s{ptr}, {off}
  s_addc_u32 s{d+1}, s{ptr+1}, 0
  s_and_b32 s{d+1}, s{d+1}, 0xffff
  s_mov_b32 s{d+2}, {nbytes}
  s_mov_b32 s{d+3}, 0x00020000''')
def scan(v, full=True):
    for sh in (1,2,4,8):
        a(f'  s_nop 1\n  v_add_u32_dpp v{v}, v{v}, v{v} row_shr:{sh} row_mask:0xf bank_mask:0xf')
    a(f'  s_nop 1\n  v_add_u32_dpp v{v}, v{v}, v{v} row_bcast:15 row_mask:0xa bank_mask:0xf')
    if full: a(f'  s_nop 1\n  v_add_u32_dpp v{v}, v{v}, v{v} row_bcast:31 row_mask:0xc bank_mask:0xf')

a(HDR+f'; @launch grid=(256,1,1) block=(1024,1,1) lds={LDSZ}\n.amdgcn_target "amdgcn-amd-amdhsa--gfx950"')
a(kstart(N))
a('''  s_cmp_ge_u32 s2, 256
  s_cbranch_scc1 L_end''')
stamp_init(); stamp(0)
a('''  s_load_dwordx4 s[4:7], s[0:1], 0
  s_load_dwordx2 s[18:19], s[0:1], 80
  s_load_dwordx4 s[8:11], s[0:1], 32
  s_load_dwordx4 s[12:15], s[0:1], 48
  s_load_dwordx2 s[16:17], s[0:1], 64
  v_lshrrev_b32 v2, 6, v0
  v_and_b32 v1, 63, v0
  v_readfirstlane_b32 s20, v2
  s_nop 3
  s_cmp_ge_u32 s20, 8
  s_cbranch_scc1 L_T''')
a('''  s_setprio 2
  v_lshlrev_b32 v3, 4, v0               ; t*16
  s_mul_i32 s21, s2, 6656
  s_waitcnt lgkmcnt(0)''')
stamp(1)
a('''  s_add_u32 s24, s4, s21
  s_addc_u32 s25, s5, 0
  s_and_b32 s25, s25, 0xffff
  s_mov_b32 s26, 6656
  s_mov_b32 s27, 0x00020000
  buffer_load_dwordx4 v[4:7], v3, s[24:27], 0 offen''')
srd_off(28,18,0,WS_DESC+256*2048)
a('''  v_mov_b32 v9, 0
  buffer_load_dword v8, v9, s[28:31], 0 offen sc1''')
srd_off(32,18,WS_ITEMS,256*NITEM*16)
srd_off(36,18,WS_RES,256*NITEM*8)
srd(a,40,16,32768)
a(f'''  s_mul_i32 s22, s2, {NITEM*8}
  v_mov_b32 v10, -1
  v_mov_b32 v11, -1
  v_mov_b32 v12, -1
  v_mov_b32 v13, -1
  buffer_store_dwordx4 v[10:13], v3, s[36:39], s22 offen sc1
  s_add_u32 s23, s22, 8192
  s_cmp_ge_u32 s20, 6
  s_cselect_b32 s23, 0x40000000, s23
  buffer_store_dwordx4 v[10:13], v3, s[36:39], s23 offen sc1''')
NM=2
if MODE=='b':
    a(f'''  s_mul_i32 s22, s2, {NITEM*16}
  buffer_store_dwordx4 v[10:13], v3, s[32:35], s22 offen sc1
  s_add_u32 s23, s22, 8192
  buffer_store_dwordx4 v[10:13], v3, s[32:35], s23 offen sc1
  s_add_u32 s23, s22, 16384
  buffer_store_dwordx4 v[10:13], v3, s[32:35], s23 offen sc1
  s_add_u32 s23, s22, 24576
  s_cmp_ge_u32 s20, 4
  s_cselect_b32 s23, 0x40000000, s23
  buffer_store_dwordx4 v[10:13], v3, s[32:35], s23 offen sc1''')
    NM=6
a(f'''  v_lshlrev_b32 v22, 2, v0
  v_mov_b32 v30, {EXT}''')
for k in range(4):
    a(f'''  v_add_u32 v23, {k}, v22
  v_mul_u32_u24 v24, 2521, v23
  v_lshrrev_b32 v24, 16, v24            ; row
  v_mul_u32_u24 v25, 26, v24
  v_sub_u32 v25, v23, v25               ; f
  v_mul_u32_u24 v24, 176, v24
  v_add_u32 v24, v30, v24
  v_subrev_u32 v26, 1, v25
  v_min_u32 v27, 40, v26                ; slot
  v_lshl_add_u32 v{14+k}, v27, 2, v24
  v_add_u32 v27, 25, v26
  v_cmp_gt_u32 vcc, 15, v26
  v_mov_b32 v28, 43
  s_nop 0
  v_cndmask_b32 v27, v28, v27, vcc
  v_lshl_add_u32 v{18+k}, v27, 2, v24''')
a(f'''  s_cmp_eq_u32 s20, 7
  s_cbranch_scc0 L_extw
  v_mov_b32 v22, 0
  v_mov_b32 v23, 0
  v_mov_b32 v24, 0
  v_mov_b32 v25, 0
  v_lshlrev_b32 v26, 4, v1
  ds_write_b128 v26, v[22:25] offset:{CNT}
  ds_write_b32 v22, v22 offset:{DONE}
  s_waitcnt vmcnt({NM})
  s_branch L_extdone
L_extw:
  v_cmp_gt_u32 vcc, 416, v0
  s_and_saveexec_b64 s[50:51], vcc
  s_waitcnt vmcnt({NM})''')
stamp(2)
for k in range(4):
    a(f'''  ds_write_b32 v{14+k}, v{4+k}
  ds_write_b32 v{18+k}, v{4+k}''')
a('''  s_mov_b64 exec, s[50:51]
L_extdone:
  v_add_u32 v8, 1, v8
  s_waitcnt lgkmcnt(0)
  s_barrier''')
stamp(3)
a(f'''  v_mul_u32_u24 v2, 176, v1
  v_mov_b32 v3, 1
  s_cmp_ge_u32 s20, 6
  s_cbranch_scc1 L_w67
  s_lshl_b32 s21, s20, 4
  v_add_u32 v2, s21, v2''')
E=lambda k:58+k
for q in range(4):
    a(f'  ds_read_b128 v[{E(4*q)}:{E(4*q+3)}], v2 offset:{EXT+16*q}')
a('  s_waitcnt lgkmcnt(3)')
for i in range(4):
    a(f'''  v_and_b32 v{4+i}, 0x3fc, v{E(i)}
  ds_add_rtn_u32 v{14+i}, v{4+i}, v3 offset:{CNT}''')
a('  s_waitcnt lgkmcnt(4)')
def pack(dst,f0,f1,f2,c=None):
    a(f'''  v_lshl_or_b32 v{dst}, {f1}, 10, {f0}
  v_lshl_or_b32 v{dst}, {f2}, 20, v{dst}''')
    if c is not None: a(f'  v_lshl_or_b32 v{dst}, {c}, 30, v{dst}')
    a(f'  v_alignbit_b32 v{dst}, v{dst}, v{dst}, 29')
for i in range(4):
    for m in range(4):
        pack(40+4*i+m, f'v{E(i+1+3*m)}', f'v{E(i+2+3*m)}', f'v{E(i+3+3*m)}', f'v{E(i)}' if m==0 else None)
a(f'''  s_branch L_packed
L_w67:
  s_cmp_eq_u32 s20, 7
  s_cbranch_scc1 L_packed''')
for q in range(7):
    a(f'  ds_read_b128 v[{E(4*q)}:{E(4*q+3)}], v2 offset:{EXT+16*q}')
a(f'''  ds_read_b32 v86, v2 offset:{EXT+160}
  s_waitcnt lgkmcnt(0)
  v_and_b32 v4, 0x3fc, v{E(24)}
  v_and_b32 v5, 0x3fc, v86
  v_mov_b32 v6, v5
  v_mov_b32 v7, v5''')
for i in range(4):
    a(f'  ds_add_rtn_u32 v{14+i}, v{4+i}, v3 offset:{CNT}')
a('  v_mov_b32 v87, 0x3ff')
for m in range(4):
    pack(40+m, f'v{E(3*m)}', f'v{E(3*m+1)}', f'v{E(3*m+2)}', f'v{E(24)}' if m==0 else None)
for m in range(4):
    pack(44+m, f'v{E(3*m)}', f'v{E(3*m+1)}', f'v{E(3*m+2)}', 'v86' if m==0 else None)
for m in range(4):
    pack(48+m, f'v{E(12+3*m)}', f'v{E(13+3*m)}', f'v{E(14+3*m)}', 'v86' if m==0 else None)
pack(52, f'v{E(24)}', 'v87', 'v87', 'v86')
pack(53, 'v87','v87','v87')
a(f'''  v_mov_b32 v54, v53
  v_mov_b32 v55, v53
L_packed:
  s_waitcnt lgkmcnt(0){' vmcnt(0)' if MODE=='b' else ''}
  s_barrier''')
stamp(4)
a(f'''  v_lshlrev_b32 v2, 4, v1
  ds_read_b128 v[20:23], v2 offset:{CNT}
  s_lshl_b32 s21, s20, 10
  s_add_u32 s21, s21, {OFFP}
  v_add_u32 v3, s21, v2
  s_waitcnt lgkmcnt(0)
  v_add_u32 v28, v20, v21
  v_add3_u32 v28, v28, v22, v23
  v_mov_b32 v29, v28''')
scan(29)
a(f'''  v_sub_u32 v24, v29, v28
  v_add_u32 v25, v24, v20
  v_add_u32 v26, v25, v21
  v_add_u32 v27, v26, v22
  s_cmp_eq_u32 s20, 7
  s_cbranch_scc0 L_dostage
  v_lshlrev_b32 v4, 13, v1
  s_lshl_b32 s21, s2, 3
  s_add_u32 s21, s21, {WS_DESC}
  s_add_u32 s22, s21, 4096''')
for k in range(4):
    a(f'''  v_lshl_or_b32 v{56+2*k}, v{20+k}, 16, v{24+k}
  v_mov_b32 v{57+2*k}, v8
  buffer_store_dwordx2 v[{56+2*k}:{57+2*k}], v4, s[28:31], s{21+(k>>1)} offen offset:{2048*(k&1)} sc1''')
a(f'''  s_branch L_staged
L_dostage:
  ds_write_b128 v3, v[24:27]''')
for i in range(4): a(f'  v_add_u32 v{4+i}, s21, v{4+i}')
a('  s_waitcnt lgkmcnt(0)')
for i in range(4): a(f'  ds_read_b32 v{4+i}, v{4+i}')
for i in range(4):
    a(f'''  s_waitcnt lgkmcnt(3)
  v_add_u32 v{14+i}, v{14+i}, v{4+i}      ; pos
  v_lshlrev_b32 v{4+i}, 4, v{14+i}
  ds_write_b128 v{4+i}, v[{40+4*i}:{43+4*i}] offset:{STAGE}''')
a('''L_staged:
  s_waitcnt lgkmcnt(0)
  s_barrier''')
stamp(5)
a(f'''  v_lshlrev_b32 v3, 4, v0
  s_mul_i32 s21, s2, {NITEM*16}''')
for j in range(4): a(f'  ds_read_b128 v[{40+4*j}:{43+4*j}], v3 offset:{STAGE+8192*j}')
a(f'''  s_add_u32 s22, s21, 8192
  s_add_u32 s23, s21, 16384
  s_add_u32 s48, s21, 24576
  s_cmp_ge_u32 s20, 4
  s_cselect_b32 s48, 0x40000000, s48
  s_waitcnt lgkmcnt(3)
  buffer_store_dwordx4 v[40:43], v3, s[32:35], s21 offen sc1
  s_waitcnt lgkmcnt(2)
  buffer_store_dwordx4 v[44:47], v3, s[32:35], s22 offen sc1
  s_waitcnt lgkmcnt(1)
  buffer_store_dwordx4 v[48:51], v3, s[32:35], s23 offen sc1
  s_waitcnt lgkmcnt(0)
  buffer_store_dwordx4 v[52:55], v3, s[32:35], s48 offen sc1''')
if MODE=='a':
    a(f'''  v_mov_b32 v2, 0
  v_mov_b32 v3, 1
  s_lshl_b32 s21, s2, 2
  s_add_u32 s21, s21, {WS_FLAG}
  s_mov_b64 exec, 1
  s_waitcnt vmcnt(0)
  ds_add_rtn_u32 v5, v2, v3 offset:{DONE}
  s_waitcnt lgkmcnt(0)
  v_readfirstlane_b32 s22, v5
  s_nop 3
  s_cmp_eq_u32 s22, 7
  s_cbranch_scc0 L_noflag
  buffer_store_dword v8, v2, s[28:31], s21 offen sc1
L_noflag:
  s_mov_b64 exec, -1''')
stamp(6)
a(f'''  s_cmp_ge_u32 s2, 250
  s_cbranch_scc1 L_C
  v_and_b32 v2, 31, v1
  s_lshl_b32 s21, s20, 5
  v_add_u32 v2, s21, v2                 ; src
  v_lshlrev_b32 v3, 3, v2
  s_lshl_b32 s21, s2, 11
  s_add_u32 s21, s21, {WS_DESC}
  s_mov_b32 s22, {SPIN}
L_pd:
  buffer_load_dwordx2 v[4:5], v3, s[28:31], s21 offen sc1
  s_waitcnt vmcnt(0)
  v_cmp_ne_u32 vcc, v5, v8
  s_cbranch_vccz L_pdok
  s_sub_u32 s22, s22, 1
  s_cmp_lg_u32 s22, 0
  s_cbranch_scc1 L_pd
  v_mov_b32 v4, 0
L_pdok:''')
stamp(7)
a(f'''  v_lshrrev_b32 v6, 16, v4              ; count
  v_and_b32 v4, 0xffff, v4              ; start
  v_mov_b32 v7, v6
  v_lshlrev_b32 v29, 2, v2
  v_mul_u32_u24 v2, {NITEM}, v2''')
scan(7, full=False)
a(f'''  v_add_u32 v4, v2, v4                  ; g0
  v_readlane_b32 s23, v7, 31            ; N_w
  v_sub_u32 v7, v7, v6                  ; prefix
  s_mul_i32 s21, s20, {CAP*4}
  s_add_u32 s21, s21, {MAP}
  s_mov_b32 s52, 0                      ; base
  s_mov_b32 s53, 0
  v_mov_b32 v31, 0x1ff8
L_pass:
  v_lshrrev_b32 v9, 5, v1               ; k
  v_subrev_u32 v10, s52, v7
  v_add_u32 v10, v10, v9
  v_add_u32 v11, v4, v9                 ; g0+k
  v_mov_b32 v12, {CAP}
L_exp:
  v_cmpx_lt_u32 vcc, v9, v6
  s_cbranch_execz L_expdone
  v_lshl_add_u32 v13, v10, 2, s21
  v_cmpx_lt_u32 vcc, v10, v12
  ds_write_b32 v13, v11
  s_mov_b64 exec, -1
  v_add_u32 v9, 2, v9
  v_add_u32 v10, 2, v10
  v_add_u32 v11, 2, v11
  s_branch L_exp
L_expdone:
  s_mov_b64 exec, -1
  v_lshl_add_u32 v13, v1, 2, s21
  s_sub_u32 s54, s23, s52               ; remaining
  v_mov_b32 v12, 0x1000000
  s_waitcnt lgkmcnt(0)''')
G=lambda j:32+j
I=lambda j:40+4*j
for j in range(5): a(f'  ds_read_b32 v{G(j)}, v13 offset:{256*j}')
if MODE=='a':
    stamp(13)
    a(f'''  s_mov_b32 s22, {SPIN}
L_pf:
  buffer_load_dword v5, v29, s[28:31], 0 offen offset:{WS_FLAG} sc1
  s_waitcnt vmcnt(0)
  v_cmp_ne_u32 vcc, v5, v8
  s_cbranch_vccz L_pfok
  s_sub_u32 s22, s22, 1
  s_cmp_lg_u32 s22, 0
  s_cbranch_scc1 L_pf
L_pfok:''')
for j in range(5):
    a(f'''  v_add_u32 v9, {64*j}, v1
  v_cmp_gt_u32 vcc, s54, v9
  s_waitcnt lgkmcnt({4-j})
  s_nop 0
  v_cndmask_b32 v{G(j)}, v12, v{G(j)}, vcc
  v_lshlrev_b32 v9, 4, v{G(j)}
  buffer_load_dwordx4 v[{I(j)}:{I(j)+3}], v9, s[32:35], 0 offen sc1
  v_lshlrev_b32 v{G(j)}, 3, v{G(j)}''')
stamp(8)
a('''  s_cmp_lg_u32 s53, 0
  s_cbranch_scc1 L_nob4
  s_barrier
  s_mov_b32 s53, 1
L_nob4:''')
stamp(9)
AD=60; DT=72
for j in range(5):
    if j>0:
        a(f'''  s_cmp_le_u32 s54, {64*j}
  s_cbranch_scc1 L_stepsdone''')
    a(f'  s_waitcnt vmcnt(4)')
    if MODE=='b':
        a(f'''  s_mov_b32 s22, {SPIN}
L_pi{j}:
  v_max3_u32 v30, v{I(j)}, v{I(j)+1}, v{I(j)+2}
  v_max_u32 v30, v30, v{I(j)+3}
  v_cmpx_eq_u32 vcc, -1, v30
  s_cbranch_execz L_piok{j}
  v_lshlrev_b32 v9, 1, v{G(j)}
  buffer_load_dwordx4 v[{I(j)}:{I(j)+3}], v9, s[32:35], 0 offen sc1
  s_mov_b64 exec, -1
  s_waitcnt vmcnt(0)
  s_sub_u32 s22, s22, 1
  s_cmp_lg_u32 s22, 0
  s_cbranch_scc1 L_pi{j}
L_piok{j}:
  s_mov_b64 exec, -1''')
    if j==0: stamp(14)
    a(f'''  v_and_b32 v30, 6, v{I(j)}
  v_lshlrev_b32 v30, 12, v30''')
    for m in range(4):
        w=I(j)+m
        a(f'''  v_and_or_b32 v{AD+3*m}, v{w}, v31, v30
  ds_read_b64 v[{DT+6*m}:{DT+6*m+1}], v{AD+3*m}
  v_alignbit_b32 v{AD+3*m+1}, v{w}, v{w}, 10
  v_alignbit_b32 v{AD+3*m+2}, v{w}, v{w}, 20
  v_and_or_b32 v{AD+3*m+1}, v{AD+3*m+1}, v31, v30
  v_and_or_b32 v{AD+3*m+2}, v{AD+3*m+2}, v31, v30
  ds_read_b64 v[{DT+6*m+2}:{DT+6*m+3}], v{AD+3*m+1}
  ds_read_b64 v[{DT+6*m+4}:{DT+6*m+5}], v{AD+3*m+2}''')
    for r in range(1,12):
        a(f'''  s_waitcnt lgkmcnt({11-r})
  v_pk_add_f32 v[{DT}:{DT+1}], v[{DT}:{DT+1}], v[{DT+2*r}:{DT+2*r+1}]''')
    a(f'''  v_min_u32 v{DT}, -2, v{DT}
  v_min_u32 v{DT+1}, -2, v{DT+1}
  buffer_store_dwordx2 v[{DT}:{DT+1}], v{G(j)}, s[36:39], 0 offen sc1''')
a(f'''L_stepsdone:
  s_add_u32 s52, s52, {CAP}
  s_cmp_lt_u32 s52, s23
  s_cbranch_scc0 L_C
  s_waitcnt vmcnt(0)
  s_branch L_pass
L_C:''')
stamp(10)
a(f'''  v_lshlrev_b32 v3, 4, v0
  s_mul_i32 s21, s2, {NITEM*8}
  s_add_u32 s23, s21, 8192
  s_cmp_ge_u32 s20, 6
  s_cselect_b32 s23, 0x40000000, s23
  s_mov_b32 s22, {SPIN}
  buffer_load_dwordx4 v[40:43], v3, s[36:39], s21 offen sc1
  buffer_load_dwordx4 v[44:47], v3, s[36:39], s23 offen sc1
L_pr:
  s_waitcnt vmcnt(0)
  v_max3_u32 v2, v40, v41, v42
  v_max3_u32 v4, v44, v45, v46
  v_max_u32 v2, v2, v43
  v_max_u32 v4, v4, v47
  v_cmp_eq_u32 s[50:51], -1, v2
  v_cmp_eq_u32 s[52:53], -1, v4
  s_nop 1
  s_or_b64 s[54:55], s[50:51], s[52:53]
  s_cbranch_scc0 L_prok
  s_mov_b64 exec, s[50:51]
  s_cbranch_execz L_pr1
  buffer_load_dwordx4 v[40:43], v3, s[36:39], s21 offen sc1
L_pr1:
  s_mov_b64 exec, s[52:53]
  s_cbranch_execz L_pr2
  buffer_load_dwordx4 v[44:47], v3, s[36:39], s23 offen sc1
L_pr2:
  s_mov_b64 exec, -1
  s_sub_u32 s22, s22, 1
  s_cmp_lg_u32 s22, 0
  s_cbranch_scc1 L_pr
  s_waitcnt vmcnt(0)
L_prok:''')
stamp(11)
a(f'''  ds_write_b128 v3, v[40:43] offset:{RES}
  s_cmp_ge_u32 s20, 6
  s_cbranch_scc1 L_nores2
  ds_write_b128 v3, v[44:47] offset:{RES+8192}
L_nores2:''')
for i in range(4): a(f'  v_lshlrev_b32 v{14+i}, 3, v{14+i}')
a(f'''  s_waitcnt lgkmcnt(0)
  s_barrier
  s_cmp_eq_u32 s20, 7
  s_cbranch_scc1 L_nogather''')
for i in range(4): a(f'  ds_read_b64 v[{40+2*i}:{41+2*i}], v{14+i} offset:{RES}')
a(f'''  s_lshl_b32 s21, s20, 9
  s_add_u32 s21, s21, {PART}
  v_lshl_add_u32 v2, v1, 3, s21
  s_waitcnt lgkmcnt(2)
  v_pk_add_f32 v[40:41], v[40:41], v[42:43]
  s_waitcnt lgkmcnt(0)
  v_pk_add_f32 v[44:45], v[44:45], v[46:47]
  v_pk_add_f32 v[40:41], v[40:41], v[44:45]
  ds_write_b64 v2, v[40:41]
L_nogather:
  s_waitcnt lgkmcnt(0)
  s_barrier
  s_cmp_eq_u32 s20, 0
  s_cbranch_scc1 L_fin''')
stamp(12); stamp_flush(40)
a(f'''  s_endpgm
L_fin:
  v_lshlrev_b32 v2, 3, v1
  v_add_u32 v2, {PART}, v2''')
for w in range(7): a(f'  ds_read_b64 v[{40+2*w}:{41+2*w}], v2 offset:{512*w}')
a('''  s_lshl_b32 s21, s2, 7
  v_lshlrev_b32 v3, 1, v1
  s_mov_b32 s22, 0x0d800000             ; 2^-100
  s_mov_b32 s23, 0x71800000             ; 2^100''')
for w in range(1,7):
    a(f'''  s_waitcnt lgkmcnt({6-w})
  v_pk_add_f32 v[40:41], v[40:41], v[{40+2*w}:{41+2*w}]''')
a(f'''  v_rcp_f32 v42, v40
  v_cmp_le_f32 s[50:51], s22, v40
  v_cmp_ge_f32 s[52:53], s23, v40
  v_cmp_ge_f32 vcc, s23, |v41|
  v_mul_f32 v42, v42, v41
  s_and_b64 s[50:51], s[50:51], s[52:53]
  s_and_b64 s[50:51], s[50:51], vcc
  v_cvt_pk_bf16_f32 v42, v42, v42
  buffer_store_short v42, v3, s[40:43], s21 offen
  s_cmp_eq_u32 s2, 0
  s_cbranch_scc0 L_noep
  v_mov_b32 v9, 0
  s_mov_b64 exec, 1
  buffer_store_dword v8, v9, s[28:31], 0 offen sc1
  s_mov_b64 exec, -1
L_noep:
  s_not_b64 s[50:51], s[50:51]
  s_cbranch_scc1 L_slow''')
stamp(12); stamp_flush(50)
a('  s_endpgm')
Cb=4; AP0=20; AP1=28; AX=36; AQ0=44; AQ1=52; AC0=60; AC1=76; Q=92; D2=100; X0=104; X1=112
PB=PAR+2048; PH=PAR+2304; PP=PAR+2560
a(f'''L_T:
  s_cmp_ge_u32 s2, 250
  s_cbranch_scc0 L_Tgo
  s_barrier
  s_barrier
  s_barrier
  s_endpgm
L_Tgo:
  s_sub_u32 s21, s20, 8                 ; tw
  v_lshrrev_b32 v2, 4, v1
  v_xor_b32 v2, v2, v1
  v_and_b32 v2, 3, v2
  v_and_b32 v3, 60, v1
  v_or_b32 v2, v2, v3
  v_lshlrev_b32 v2, 4, v2
  s_lshl_b32 s22, s21, 13               ; tw*8KB
  s_add_u32 s23, s22, {TAB}
  s_mov_b32 m0, s23
  s_waitcnt lgkmcnt(0)''')
srd(a,24,6,64000)
for i in range(4): a(f'  buffer_load_dwordx4 v2, s[24:27], s22 offen offset:{1024*i} lds')
a(f'''  s_add_u32 s22, s22, 4096
  s_add_u32 s23, s23, 4096
  s_mov_b32 m0, s23
  s_cmp_lt_u32 s21, 4''')
for i in range(4): a(f'  buffer_load_dwordx4 v2, s[24:27], s22 offen offset:{1024*i} lds')
a(f'''  s_cbranch_scc0 L_Tnopar
  v_lshlrev_b32 v2, 4, v1
  v_lshlrev_b32 v3, 2, v1
  s_cmp_eq_u32 s21, 0
  s_cbranch_scc0 L_Tp1''')
srd(a,28,8,2048)
a(f'''  s_mov_b32 m0, {PAR}
  s_nop 0
  buffer_load_dwordx4 v2, s[28:31], 0 offen lds
  buffer_load_dwordx4 v2, s[28:31], 0 offen offset:1024 lds
  s_branch L_Tnopar
L_Tp1:
  s_cmp_eq_u32 s21, 1
  s_cbranch_scc0 L_Tp2''')
srd(a,28,10,64)
a(f'''  s_mov_b32 m0, {PB}
  s_nop 0
  buffer_load_dword v3, s[28:31], 0 offen lds
  s_branch L_Tnopar
L_Tp2:
  s_cmp_eq_u32 s21, 2
  s_cbranch_scc0 L_Tp3''')
srd(a,28,12,64)
a(f'''  s_mov_b32 m0, {PH}
  s_nop 0
  buffer_load_dword v3, s[28:31], 0 offen lds
  s_branch L_Tnopar
L_Tp3:''')
srd(a,28,14,64)
a(f'''  s_mov_b32 m0, {PP}
  s_nop 0
  buffer_load_dword v3, s[28:31], 0 offen lds
L_Tnopar:
  s_barrier
  v_lshrrev_b32 v2, 5, v1               ; hf
  v_and_b32 v3, 31, v1                  ; n
  s_and_b32 s22, s21, 1                 ; rp
  s_lshr_b32 s21, s21, 1                ; cq''')
for r in range(16): a(f'  v_mov_b32 v{AC0+r}, 0')
a(f'''  v_mov_b32 v0, {PAR}
  v_lshl_add_u32 v120, v2, 9, v0
  v_lshl_add_u32 v120, v3, 1, v120
  v_and_b32 v121, 0x13, v3
  v_and_b32 v122, 4, v3
  v_lshl_or_b32 v121, v122, 1, v121
  v_and_b32 v122, 8, v3
  v_lshrrev_b32 v122, 1, v122
  v_or_b32 v121, v121, v122             ; pi(m)
  v_lshlrev_b32 v121, 6, v121
  v_lshl_add_u32 v122, v2, 4, v0
  v_add_u32 v121, v121, v122
  v_lshl_add_u32 v123, v2, 3, v0
  s_lshl_b32 s23, s2, 2
  s_lshl_b32 s48, s22, 1
  s_add_u32 s23, s23, s48               ; v0
  s_lshl_b32 s48, s23, 6
  s_add_u32 s48, s48, {TAB}
  s_and_b32 s49, s2, 3
  v_xor_b32 v126, s49, v2
  v_lshl_add_u32 v126, v126, 4, s48
  v_xor_b32 v127, 32, v126
  v_bfe_u32 v124, v1, 3, 1
  v_lshlrev_b32 v124, 6, v124
  v_add_u32 v125, v127, v124
  v_add_u32 v124, v126, v124
  s_barrier
  v_bfe_u32 v0, v3, 2, 2
  v_xor_b32 v0, v0, v2
  v_lshlrev_b32 v0, 4, v0
  v_lshl_add_u32 v0, v3, 6, v0
  s_lshl_b32 s49, s21, 14
  s_add_u32 s49, s49, {TAB}
  v_add_u32 v118, s49, v0
  s_waitcnt vmcnt(0)
  s_barrier''')
stamp(5)
for ks in range(2):
    a(f'''  ds_read_b128 v[{Q+4*ks}:{Q+4*ks+3}], v121 offset:{32*ks}
  ds_read_b128 v[{AX+4*ks}:{AX+4*ks+3}], v122 offset:{2304+32*ks}''')
for ks in range(2):
    a(f'''  ds_read_b128 v[{AP0+4*ks}:{AP0+4*ks+3}], v{126+ks}
  ds_read_b128 v[{AP1+4*ks}:{AP1+4*ks+3}], v{126+ks} offset:64''')
a('  s_waitcnt lgkmcnt(4)')
a(f'''  v_mfma_f32_32x32x16_bf16 v[{Cb}:{Cb+15}], v[{Q}:{Q+3}], v[{AX}:{AX+3}], 0
  v_mfma_f32_32x32x16_bf16 v[{Cb}:{Cb+15}], v[{Q+4}:{Q+7}], v[{AX+4}:{AX+7}], v[{Cb}:{Cb+15}]''')
for r in range(8):
    ks,j=r>>3,r&7
    a(f'  ds_read_u16_d16_hi v{AC0+r}, v120 offset:{(16*ks+j)*64}')
a('  s_waitcnt lgkmcnt(4)')
for r in range(8,16):
    ks,j=r>>3,r&7
    a(f'  ds_read_u16_d16_hi v{AC0+r}, v120 offset:{(16*ks+j)*64}')
a(f'''  v_mov_b32 v120, v118
  v_xor_b32 v119, 32, v118
  s_waitcnt lgkmcnt(4)''')
for ks in range(2):
    a(f'''  ds_read_b128 v[{X0+4*ks}:{X0+4*ks+3}], v{124+ks}
  ds_read_b128 v[{AC1+8+4*ks}:{AC1+8+4*ks+3}], v122 offset:{2560+32*ks}''')
for i in range(4):
    a(f'''  ds_read_b64 v[{AC1+2*i}:{AC1+2*i+1}], v123 offset:{2048+16*i}''')
a(f'''  v_mov_b32 v125, v119
  v_mov_b32 v126, 0xffff0000
  s_waitcnt lgkmcnt(8)''')
for i in range(4):
    a(f'''  ds_read_b64 v[{AQ0+2*i}:{AQ0+2*i+1}], v123 offset:{2304+16*i}''')
def lanemask(f):
    m=0
    for l in range(64):
        if f(l): m|=1<<l
    return m
match=lambda l: ((l>>2)&1)==((l>>4)&1)
mu=lanemask(lambda l: match(l) and (l&3)==0)
mp=lanemask(lambda l: match(l) and (l&3)==1)
m0=lanemask(lambda l: match(l) and (l&3)==0 and ((l>>3)&1)==0)
m1=lanemask(lambda l: match(l) and (l&3)==0 and ((l>>3)&1)==1)
for sreg,vreg,m in ((50,116,mu),(52,117,mp),(54,118,m0),(56,119,m1)):
    a(f'''  s_mov_b32 s{sreg}, {m&0xffffffff:#x}
  s_mov_b32 s{sreg+1}, {m>>32:#x}
  v_cndmask_b32 v{vreg}, 0, -1, s[{sreg}:{sreg+1}]''')
for AP in (AP0,AP1):
    for r in range(8):
        a(f'''  v_lshlrev_b32 v2, 16, v{AP+r}
  v_and_b32 v0, v126, v{AP+r}
  v_mul_f32 v2, v2, v{AC0+2*r}
  v_mul_f32 v0, v0, v{AC0+2*r+1}
  v_cvt_pk_bf16_f32 v{AP+r}, v2, v0''')
a('  s_waitcnt lgkmcnt(0)')
for r in range(8):
    P=AC1+8+r
    a(f'''  v_and_b32 v{P}, v117, v{P}
  v_lshlrev_b32 v2, 16, v{P}
  v_and_b32 v0, v126, v{P}
  v_and_or_b32 v2, v{Cb+2*r}, v116, v2
  v_and_or_b32 v0, v{Cb+2*r+1}, v116, v0
  v_lshlrev_b32 v127, 16, v{X0+r}
  v_and_b32 v{X0+r}, v126, v{X0+r}
  v_mul_f32 v2, v2, v127
  v_mul_f32 v0, v0, v{X0+r}
  v_cvt_pk_bf16_f32 v{AX+r}, v2, v0''')
a(f'''  ds_read_b128 v[{X0}:{X0+3}], v120
  ds_read_b128 v[{X0+4}:{X0+7}], v125
  v_mov_b32 v127, 0x7fff7fff''')
for r in range(8):
    a(f'''  v_lshlrev_b32 v{Cb+2*r}, 16, v{AC1+r}
  v_and_b32 v{Cb+2*r+1}, v126, v{AC1+r}
  v_and_b32 v{AC1+r}, v127, v{AC1+r}
  v_and_b32 v{AQ1+r}, v119, v{AQ0+r}
  v_and_b32 v{AQ0+r}, v118, v{AQ0+r}''')
def m16(A,B,C):
    a(f'  v_mfma_f32_16x16x32_bf16 v[{D2}:{D2+3}], v[{A}:{A+3}], v[{B}:{B+3}], {C}')
DD=f'v[{D2}:{D2+3}]'
a('  s_nop 1')
m16(AQ0,AC1,'0'); m16(AQ0+4,AC1+4,DD); m16(AQ1,AC1,DD); m16(AQ1+4,AC1+4,DD)
a(f'''  v_lshrrev_b32 v2, 5, v1
  s_lshl_b32 s22, s22, 1
  v_add_u32 v2, s22, v2
  v_lshlrev_b32 v2, 13, v2
  v_lshl_add_u32 v121, v3, 3, v2
  s_lshl_b32 s21, s21, 11
  v_add_u32 v121, s21, v121
  v_mov_b32 v122, 0x3f38aa3b            ; log2(e)/2
  s_mov_b32 s23, 4
  s_nop 0
  v_mul_f32 v123, v{D2}, v122
  v_sub_f32 v123, 0, v123''')
stamp(6)
def body(X,XN,off,xoff):
    a(f'''  s_waitcnt lgkmcnt(0)
  ds_read_b128 v[{XN}:{XN+3}], v120 offset:{xoff}
  ds_read_b128 v[{XN+4}:{XN+7}], v125 offset:{xoff}''')
    m16(AX,X,'0')
    a(f'''  v_mfma_f32_32x32x16_bf16 v[{AC0}:{AC0+15}], v[{AP0}:{AP0+3}], v[{X}:{X+3}], v[{Cb}:{Cb+15}]
  v_mfma_f32_32x32x16_bf16 v[{AC0}:{AC0+15}], v[{AP0+4}:{AP0+7}], v[{X+4}:{X+7}], v[{AC0}:{AC0+15}]''')
    m16(AX+4,X+4,DD)
    a(f'''  v_mfma_f32_32x32x16_bf16 v[{AC1}:{AC1+15}], v[{AP1}:{AP1+3}], v[{X}:{X+3}], v[{Cb}:{Cb+15}]
  v_mfma_f32_32x32x16_bf16 v[{AC1}:{AC1+15}], v[{AP1+4}:{AP1+7}], v[{X+4}:{X+7}], v[{AC1}:{AC1+15}]
  s_nop 8''')
    for r in range(8): a(f'  v_cvt_pk_bf16_f32 v{Q+r}, |v{AC0+2*r}|, |v{AC0+2*r+1}|')
    a('  s_nop 1')
    m16(AQ0,Q,DD); m16(AQ0+4,Q+4,DD)
    for r in range(8): a(f'  v_cvt_pk_bf16_f32 v{Q+r}, |v{AC1+2*r}|, |v{AC1+2*r+1}|')
    a('  s_nop 1')
    m16(AQ1,Q,DD); m16(AQ1+4,Q+4,DD)
    a(f'''  s_nop 7
  v_fma_f32 v126, v{D2}, v122, v123
  v_exp_f32 v126, v126
  s_nop 0
  v_mul_f32 v127, v126, v{D2+1}
  ds_write_b64 v121, v[126:127] offset:{off}''')
a('L_Tloop:')
body(X0,X1,0,2048); body(X1,X0,256,4096)
a(f'''  v_add_u32 v121, 512, v121
  v_add_u32 v120, 4096, v120
  v_add_u32 v125, 4096, v125
  s_sub_u32 s23, s23, 1
  s_cmp_lg_u32 s23, 0
  s_cbranch_scc1 L_Tloop
  s_cmp_eq_u32 s21, {3<<11}
  s_cbranch_scc0 L_Tnoz
  v_mov_b32 v126, 0
  v_mov_b32 v127, 0
  v_subrev_u32 v121, 256, v121
  v_cmp_le_u32 vcc, 8, v3
  s_and_saveexec_b64 s[50:51], vcc
  ds_write_b64 v121, v[126:127]
  s_mov_b64 exec, s[50:51]
L_Tnoz:
  s_waitcnt lgkmcnt(0)''')
stamp(9)
a('  s_barrier')
stamp_flush(4,True)
a('  s_endpgm')
a('L_slow:')
slow_wave(a,'S')
a('L_end:\n  s_endpgm')
a(kd(N,128))
open(sys.argv[1],'w').write(a.text())
print('LDS',LDSZ,'mode',MODE)
```

```python
from common import *
import sys
DBG = 'dbg' in sys.argv
STAMP = 'stamp' in sys.argv or DBG
MODE = 'a' if 'modea' in sys.argv else 'b'
N='standalone__factorization_afm__recsys_kernel'
SLICE=0; STAGE=32768; CNT=61440; DONE=62464; EXT=62592; OFFP=73856; PAR=82048; TAB=84992; CAP=320
MAP=EXT; RES=STAGE; PART=OFFP
LDSZ=TAB+65536
NITEM=1792
WS_FLAG=1024; WS_DESC=4096; WS_ITEMS=1<<20; WS_RES=16<<20; WS_STAMP=128<<20
SPIN=200000
a=Asm()
def stamp(k):
    if STAMP: a(f'  s_memrealtime s[{64+2*k}:{65+2*k}]')
def stamp_init():
    if STAMP:
        for k in range(16): a(f'  s_mov_b32 s{64+2*k}, 0')
def stamp_flush(tmp, T=False):
    if DBG and tmp!=50: return
    if DBG:
        a('  s_waitcnt lgkmcnt(0)\n  s_mov_b64 exec, -1')
        a(f'''  s_load_dwordx2 s[44:45], s[0:1], 72
  s_waitcnt lgkmcnt(0)
  s_and_b32 s45, s45, 0xffff
  s_mov_b32 s46, 256
  s_mov_b32 s47, 0x00020000
  v_mov_b32 v{tmp}, 0
  s_not_b32 s48, s64''')
        mp = {12:6,13:9} if T else {1:0,2:2,3:3,4:5,5:6,6:7,7:8,8:9,9:10,10:11,11:12,14:14,15:4}
        if not T: a(f'  v_writelane_b32 v{tmp}, s48, 0')
        for w,k in mp.items(): a(f'  v_writelane_b32 v{tmp}, s{64+2*k}, {w}')
        a(f'''  v_mbcnt_lo_u32_b32 v{tmp+1}, -1, 0
  v_mbcnt_hi_u32_b32 v{tmp+1}, -1, v{tmp+1}
  v_lshlrev_b32 v{tmp+1}, 2, v{tmp+1}
  s_mov_b64 exec, 0xffff
  buffer_atomic_umax v{tmp}, v{tmp+1}, s[44:47], 0 offen
  s_mov_b64 exec, -1''')
        return
    if STAMP:
        a('  s_waitcnt lgkmcnt(0)\n  s_mov_b64 exec, -1')
        a(f'''  s_add_u32 s44, s18, {WS_STAMP}
  s_addc_u32 s45, s19, 0
  s_and_b32 s45, s45, 0xffff
  s_mov_b32 s46, {256*16*128}
  s_mov_b32 s47, 0x00020000
  v_mov_b32 v{tmp}, 0''')
        for k in range(16): a(f'  v_writelane_b32 v{tmp}, s{64+2*k}, {k}')
        a(f'''  s_lshl_b32 s48, s2, 4
  s_add_u32 s48, s48, s20
  s_lshl_b32 s48, s48, 7
  v_mbcnt_lo_u32_b32 v{tmp+1}, -1, 0
  v_mbcnt_hi_u32_b32 v{tmp+1}, -1, v{tmp+1}
  v_lshlrev_b32 v{tmp+1}, 2, v{tmp+1}
  s_mov_b64 exec, 0xffff
  buffer_store_dword v{tmp}, v{tmp+1}, s[44:47], s48 offen
  s_mov_b64 exec, -1''')
def srd_off(d, ptr, off, nbytes):
    a(f'''  s_add_u32 s{d}, s{ptr}, {off}
  s_addc_u32 s{d+1}, s{ptr+1}, 0
  s_and_b32 s{d+1}, s{d+1}, 0xffff
  s_mov_b32 s{d+2}, {nbytes}
  s_mov_b32 s{d+3}, 0x00020000''')
def scan(v, full=True):
    for sh in (1,2,4,8):
        a(f'  s_nop 1\n  v_add_u32_dpp v{v}, v{v}, v{v} row_shr:{sh} row_mask:0xf bank_mask:0xf')
    a(f'  s_nop 1\n  v_add_u32_dpp v{v}, v{v}, v{v} row_bcast:15 row_mask:0xa bank_mask:0xf')
    if full: a(f'  s_nop 1\n  v_add_u32_dpp v{v}, v{v}, v{v} row_bcast:31 row_mask:0xc bank_mask:0xf')

a(HDR+f'; @launch grid=(256,1,1) block=(1024,1,1) lds={LDSZ}\n.amdgcn_target "amdgcn-amd-amdhsa--gfx950"')
a(kstart(N))
a('''  s_cmp_ge_u32 s2, 256
  s_cbranch_scc1 L_end''')
stamp_init(); stamp(0)
if 'clamp' in sys.argv: a('  s_memrealtime s[96:97]')
a('''  s_load_dwordx4 s[4:7], s[0:1], 0
  s_load_dwordx2 s[18:19], s[0:1], 80
  s_load_dwordx4 s[8:11], s[0:1], 32
  s_load_dwordx4 s[12:15], s[0:1], 48
  s_load_dwordx2 s[16:17], s[0:1], 64
  v_lshrrev_b32 v2, 6, v0
  v_and_b32 v1, 63, v0
  v_readfirstlane_b32 s20, v2
  s_nop 3
  s_cmp_ge_u32 s20, 8
  s_cbranch_scc1 L_T''')
a('''  s_setprio 2
  v_lshlrev_b32 v3, 4, v0               ; t*16
  s_mul_i32 s21, s2, 6656
  s_waitcnt lgkmcnt(0)''')
stamp(1)
a('''  s_add_u32 s24, s4, s21
  s_addc_u32 s25, s5, 0
  s_and_b32 s25, s25, 0xffff
  s_mov_b32 s26, 6656
  s_mov_b32 s27, 0x00020000
  buffer_load_dwordx4 v[4:7], v3, s[24:27], 0 offen''')
srd_off(28,18,0,WS_DESC+256*2048)
a('''  v_mov_b32 v9, 0
  buffer_load_dword v8, v9, s[28:31], 0 offen sc1''')
srd_off(32,18,WS_ITEMS,256*NITEM*16)
srd_off(36,18,WS_RES,256*NITEM*8)
srd(a,40,16,32768)
a(f'''  s_mul_i32 s22, s2, {NITEM*8}
  v_mov_b32 v10, -1
  v_mov_b32 v11, -1
  v_mov_b32 v12, -1
  v_mov_b32 v13, -1
  buffer_store_dwordx4 v[10:13], v3, s[36:39], s22 offen sc1
  s_add_u32 s23, s22, 8192
  s_cmp_ge_u32 s20, 6
  s_cselect_b32 s23, 0x40000000, s23
  buffer_store_dwordx4 v[10:13], v3, s[36:39], s23 offen sc1''')
NM=2
if MODE=='b':
    a(f'''  s_mul_i32 s22, s2, {NITEM*16}
  buffer_store_dwordx4 v[10:13], v3, s[32:35], s22 offen sc1
  s_add_u32 s23, s22, 8192
  buffer_store_dwordx4 v[10:13], v3, s[32:35], s23 offen sc1
  s_add_u32 s23, s22, 16384
  buffer_store_dwordx4 v[10:13], v3, s[32:35], s23 offen sc1
  s_add_u32 s23, s22, 24576
  s_cmp_ge_u32 s20, 4
  s_cselect_b32 s23, 0x40000000, s23
  buffer_store_dwordx4 v[10:13], v3, s[32:35], s23 offen sc1''')
    NM=6
a(f'''  v_lshlrev_b32 v22, 2, v0
  v_mov_b32 v30, {EXT}''')
for k in range(4):
    a(f'''  v_add_u32 v23, {k}, v22
  v_mul_u32_u24 v24, 2521, v23
  v_lshrrev_b32 v24, 16, v24            ; row
  v_mul_u32_u24 v25, 26, v24
  v_sub_u32 v25, v23, v25               ; f
  v_mul_u32_u24 v24, 176, v24
  v_add_u32 v24, v30, v24
  v_subrev_u32 v26, 1, v25
  v_min_u32 v27, 40, v26                ; slot
  v_lshl_add_u32 v{14+k}, v27, 2, v24
  v_add_u32 v27, 25, v26
  v_cmp_gt_u32 vcc, 15, v26
  v_mov_b32 v28, 43
  s_nop 0
  v_cndmask_b32 v27, v28, v27, vcc
  v_lshl_add_u32 v{18+k}, v27, 2, v24''')
a(f'''  s_cmp_eq_u32 s20, 7
  s_cbranch_scc0 L_extw
  v_mov_b32 v22, 0
  v_mov_b32 v23, 0
  v_mov_b32 v24, 0
  v_mov_b32 v25, 0
  v_lshlrev_b32 v26, 4, v1
  ds_write_b128 v26, v[22:25] offset:{CNT}
  ds_write_b32 v22, v22 offset:{DONE}
  s_waitcnt vmcnt({NM})
  s_branch L_extdone
L_extw:
  v_cmp_gt_u32 vcc, 416, v0
  s_and_saveexec_b64 s[50:51], vcc
  s_waitcnt vmcnt({NM})''')
stamp(2)
for k in range(4):
    a(f'''  ds_write_b32 v{14+k}, v{4+k}
  ds_write_b32 v{18+k}, v{4+k}''')
a('''  s_mov_b64 exec, s[50:51]
L_extdone:
  v_add_u32 v8, 1, v8
  s_waitcnt lgkmcnt(0)
  s_barrier''')
stamp(3)
a(f'''  v_mul_u32_u24 v2, 176, v1
  v_mov_b32 v3, 1
  s_cmp_ge_u32 s20, 6
  s_cbranch_scc1 L_w67
  s_lshl_b32 s21, s20, 4
  v_add_u32 v2, s21, v2''')
E=lambda k:58+k
for q in range(4):
    a(f'  ds_read_b128 v[{E(4*q)}:{E(4*q+3)}], v2 offset:{EXT+16*q}')
a('  s_waitcnt lgkmcnt(3)')
for i in range(4):
    a(f'''  v_and_b32 v{4+i}, 0x3fc, v{E(i)}
  ds_add_rtn_u32 v{14+i}, v{4+i}, v3 offset:{CNT}''')
a('  s_waitcnt lgkmcnt(4)')
def pack(dst,f0,f1,f2,c=None):
    a(f'''  v_lshl_or_b32 v{dst}, {f1}, 10, {f0}
  v_lshl_or_b32 v{dst}, {f2}, 20, v{dst}''')
    if c is not None: a(f'  v_lshl_or_b32 v{dst}, {c}, 30, v{dst}')
    a(f'  v_alignbit_b32 v{dst}, v{dst}, v{dst}, 29')
for i in range(4):
    for m in range(4):
        pack(40+4*i+m, f'v{E(i+1+3*m)}', f'v{E(i+2+3*m)}', f'v{E(i+3+3*m)}', f'v{E(i)}' if m==0 else None)
a(f'''  s_branch L_packed
L_w67:
  s_cmp_eq_u32 s20, 7
  s_cbranch_scc1 L_packed''')
for q in range(7):
    a(f'  ds_read_b128 v[{E(4*q)}:{E(4*q+3)}], v2 offset:{EXT+16*q}')
a(f'''  ds_read_b32 v86, v2 offset:{EXT+160}
  s_waitcnt lgkmcnt(0)
  v_and_b32 v4, 0x3fc, v{E(24)}
  v_and_b32 v5, 0x3fc, v86
  v_mov_b32 v6, v5
  v_mov_b32 v7, v5''')
for i in range(4):
    a(f'  ds_add_rtn_u32 v{14+i}, v{4+i}, v3 offset:{CNT}')
a('  v_mov_b32 v87, 0x3ff')
for m in range(4):
    pack(40+m, f'v{E(3*m)}', f'v{E(3*m+1)}', f'v{E(3*m+2)}', f'v{E(24)}' if m==0 else None)
for m in range(4):
    pack(44+m, f'v{E(3*m)}', f'v{E(3*m+1)}', f'v{E(3*m+2)}', 'v86' if m==0 else None)
for m in range(4):
    pack(48+m, f'v{E(12+3*m)}', f'v{E(13+3*m)}', f'v{E(14+3*m)}', 'v86' if m==0 else None)
pack(52, f'v{E(24)}', 'v87', 'v87', 'v86')
pack(53, 'v87','v87','v87')
a(f'''  v_mov_b32 v54, v53
  v_mov_b32 v55, v53
L_packed:
  s_waitcnt lgkmcnt(0){' vmcnt(0)' if MODE=='b' else ''}
  s_barrier''')
stamp(4)
a(f'''  v_lshlrev_b32 v2, 4, v1
  ds_read_b128 v[20:23], v2 offset:{CNT}
  s_lshl_b32 s21, s20, 10
  s_add_u32 s21, s21, {OFFP}
  v_add_u32 v3, s21, v2
  s_waitcnt lgkmcnt(0)
  v_add_u32 v28, v20, v21
  v_add3_u32 v28, v28, v22, v23
  v_mov_b32 v29, v28''')
scan(29)
a(f'''  v_sub_u32 v24, v29, v28
  v_add_u32 v25, v24, v20
  v_add_u32 v26, v25, v21
  v_add_u32 v27, v26, v22
  s_cmp_eq_u32 s20, 7
  s_cbranch_scc0 L_dostage
  v_lshlrev_b32 v4, 13, v1
  s_lshl_b32 s21, s2, 3
  s_add_u32 s21, s21, {WS_DESC}
  s_add_u32 s22, s21, 4096''')
for k in range(4):
    a(f'''  v_lshl_or_b32 v{56+2*k}, v{20+k}, 16, v{24+k}
  v_mov_b32 v{57+2*k}, v8
  buffer_store_dwordx2 v[{56+2*k}:{57+2*k}], v4, s[28:31], s{21+(k>>1)} offen offset:{2048*(k&1)} sc1''')
a(f'''  s_branch L_staged
L_dostage:
  ds_write_b128 v3, v[24:27]''')
for i in range(4): a(f'  v_add_u32 v{4+i}, s21, v{4+i}')
a('  s_waitcnt lgkmcnt(0)')
for i in range(4): a(f'  ds_read_b32 v{4+i}, v{4+i}')
for i in range(4):
    a(f'''  s_waitcnt lgkmcnt(3)
  v_add_u32 v{14+i}, v{14+i}, v{4+i}      ; pos
  v_lshlrev_b32 v{4+i}, 4, v{14+i}
  ds_write_b128 v{4+i}, v[{40+4*i}:{43+4*i}] offset:{STAGE}''')
a('''L_staged:
  s_waitcnt lgkmcnt(0)
  s_barrier''')
stamp(5)
a(f'''  v_lshlrev_b32 v3, 4, v0
  s_mul_i32 s21, s2, {NITEM*16}''')
for j in range(4): a(f'  ds_read_b128 v[{40+4*j}:{43+4*j}], v3 offset:{STAGE+8192*j}')
a(f'''  s_add_u32 s22, s21, 8192
  s_add_u32 s23, s21, 16384
  s_add_u32 s48, s21, 24576
  s_cmp_ge_u32 s20, 4
  s_cselect_b32 s48, 0x40000000, s48
  s_waitcnt lgkmcnt(3)
  buffer_store_dwordx4 v[40:43], v3, s[32:35], s21 offen sc1
  s_waitcnt lgkmcnt(2)
  buffer_store_dwordx4 v[44:47], v3, s[32:35], s22 offen sc1
  s_waitcnt lgkmcnt(1)
  buffer_store_dwordx4 v[48:51], v3, s[32:35], s23 offen sc1
  s_waitcnt lgkmcnt(0)
  buffer_store_dwordx4 v[52:55], v3, s[32:35], s48 offen sc1''')
if MODE=='a':
    a(f'''  v_mov_b32 v2, 0
  v_mov_b32 v3, 1
  s_lshl_b32 s21, s2, 2
  s_add_u32 s21, s21, {WS_FLAG}
  s_mov_b64 exec, 1
  s_waitcnt vmcnt(0)
  ds_add_rtn_u32 v5, v2, v3 offset:{DONE}
  s_waitcnt lgkmcnt(0)
  v_readfirstlane_b32 s22, v5
  s_nop 3
  s_cmp_eq_u32 s22, 7
  s_cbranch_scc0 L_noflag
  buffer_store_dword v8, v2, s[28:31], s21 offen sc1
L_noflag:
  s_mov_b64 exec, -1''')
stamp(6)
a(f'''  s_cmp_ge_u32 s2, 250
  s_cbranch_scc1 L_C
  v_and_b32 v2, 31, v1
  s_lshl_b32 s21, s20, 5
  v_add_u32 v2, s21, v2                 ; src
  v_lshlrev_b32 v3, 3, v2
  s_lshl_b32 s21, s2, 11
  s_add_u32 s21, s21, {WS_DESC}
  s_mov_b32 s22, {SPIN}
L_pd:
  buffer_load_dwordx2 v[4:5], v3, s[28:31], s21 offen sc1
  s_waitcnt vmcnt(0)
  v_cmp_ne_u32 vcc, v5, v8
  s_cbranch_vccz L_pdok
  s_sub_u32 s22, s22, 1
  s_cmp_lg_u32 s22, 0
  s_cbranch_scc1 L_pd
  v_mov_b32 v4, 0
L_pdok:''')
stamp(7)
a(f'''  v_lshrrev_b32 v6, 16, v4              ; count
  v_and_b32 v4, 0xffff, v4              ; start
  v_mov_b32 v7, v6
  v_lshlrev_b32 v29, 2, v2
  v_mul_u32_u24 v2, {NITEM}, v2''')
scan(7, full=False)
a(f'''  v_add_u32 v4, v2, v4                  ; g0
  v_readlane_b32 s23, v7, 31            ; N_w
  v_sub_u32 v7, v7, v6                  ; prefix
  s_mul_i32 s21, s20, {CAP*4}
  s_add_u32 s21, s21, {MAP}
  s_mov_b32 s52, 0                      ; base
  s_mov_b32 s53, 0
  v_mov_b32 v31, 0x1ff8
L_pass:
  v_lshrrev_b32 v9, 5, v1               ; k
  v_subrev_u32 v10, s52, v7
  v_add_u32 v10, v10, v9
  v_add_u32 v11, v4, v9                 ; g0+k
  v_mov_b32 v12, {CAP}
L_exp:
  v_cmpx_lt_u32 vcc, v9, v6
  s_cbranch_execz L_expdone
  v_lshl_add_u32 v13, v10, 2, s21
  v_cmpx_lt_u32 vcc, v10, v12
  ds_write_b32 v13, v11
  s_mov_b64 exec, -1
  v_add_u32 v9, 2, v9
  v_add_u32 v10, 2, v10
  v_add_u32 v11, 2, v11
  s_branch L_exp
L_expdone:
  s_mov_b64 exec, -1
  v_lshl_add_u32 v13, v1, 2, s21
  s_sub_u32 s54, s23, s52               ; remaining
  v_mov_b32 v12, 0x1000000
  s_waitcnt lgkmcnt(0)''')
G=lambda j:32+j
I=lambda j:40+4*j
for j in range(5): a(f'  ds_read_b32 v{G(j)}, v13 offset:{256*j}')
if MODE=='a':
    stamp(13)
    a(f'''  s_mov_b32 s22, {SPIN}
L_pf:
  buffer_load_dword v5, v29, s[28:31], 0 offen offset:{WS_FLAG} sc1
  s_waitcnt vmcnt(0)
  v_cmp_ne_u32 vcc, v5, v8
  s_cbranch_vccz L_pfok
  s_sub_u32 s22, s22, 1
  s_cmp_lg_u32 s22, 0
  s_cbranch_scc1 L_pf
L_pfok:''')
for j in range(5):
    a(f'''  v_add_u32 v9, {64*j}, v1
  v_cmp_gt_u32 vcc, s54, v9
  s_waitcnt lgkmcnt({4-j})
  s_nop 0
  v_cndmask_b32 v{G(j)}, v12, v{G(j)}, vcc
  v_lshlrev_b32 v9, 4, v{G(j)}
  buffer_load_dwordx4 v[{I(j)}:{I(j)+3}], v9, s[32:35], 0 offen sc1
  v_lshlrev_b32 v{G(j)}, 3, v{G(j)}''')
stamp(8)
a('''  s_cmp_lg_u32 s53, 0
  s_cbranch_scc1 L_nob4
  s_barrier
  s_mov_b32 s53, 1
L_nob4:''')
stamp(9)
AD=60; DT=72
for j in range(5):
    if j>0:
        a(f'''  s_cmp_le_u32 s54, {64*j}
  s_cbranch_scc1 L_stepsdone''')
    a(f'  s_waitcnt vmcnt(4)')
    if MODE=='b':
        a(f'''  s_mov_b32 s22, {SPIN}
L_pi{j}:
  v_max3_u32 v30, v{I(j)}, v{I(j)+1}, v{I(j)+2}
  v_max_u32 v30, v30, v{I(j)+3}
  v_cmpx_eq_u32 vcc, -1, v30
  s_cbranch_execz L_piok{j}
  v_lshlrev_b32 v9, 1, v{G(j)}
  buffer_load_dwordx4 v[{I(j)}:{I(j)+3}], v9, s[32:35], 0 offen sc1
  s_mov_b64 exec, -1
  s_waitcnt vmcnt(0)
  s_sub_u32 s22, s22, 1
  s_cmp_lg_u32 s22, 0
  s_cbranch_scc1 L_pi{j}
L_piok{j}:
  s_mov_b64 exec, -1''')
    if j==0: stamp(14)
    a(f'''  v_and_b32 v30, 6, v{I(j)}
  v_lshlrev_b32 v30, 12, v30''')
    for m in range(4):
        w=I(j)+m
        a(f'''  v_and_or_b32 v{AD+3*m}, v{w}, v31, v30
  ds_read_b64 v[{DT+6*m}:{DT+6*m+1}], v{AD+3*m}
  v_alignbit_b32 v{AD+3*m+1}, v{w}, v{w}, 10
  v_alignbit_b32 v{AD+3*m+2}, v{w}, v{w}, 20
  v_and_or_b32 v{AD+3*m+1}, v{AD+3*m+1}, v31, v30
  v_and_or_b32 v{AD+3*m+2}, v{AD+3*m+2}, v31, v30
  ds_read_b64 v[{DT+6*m+2}:{DT+6*m+3}], v{AD+3*m+1}
  ds_read_b64 v[{DT+6*m+4}:{DT+6*m+5}], v{AD+3*m+2}''')
    for r in range(1,12):
        a(f'''  s_waitcnt lgkmcnt({11-r})
  v_pk_add_f32 v[{DT}:{DT+1}], v[{DT}:{DT+1}], v[{DT+2*r}:{DT+2*r+1}]''')
    a(f'''  v_min_u32 v{DT}, -2, v{DT}
  v_min_u32 v{DT+1}, -2, v{DT+1}
  buffer_store_dwordx2 v[{DT}:{DT+1}], v{G(j)}, s[36:39], 0 offen sc1''')
a(f'''L_stepsdone:
  s_add_u32 s52, s52, {CAP}
  s_cmp_lt_u32 s52, s23
  s_cbranch_scc0 L_C
  s_waitcnt vmcnt(0)
  s_branch L_pass
L_C:''')
stamp(10)
a(f'''  v_lshlrev_b32 v3, 4, v0
  s_mul_i32 s21, s2, {NITEM*8}
  s_add_u32 s23, s21, 8192
  s_cmp_ge_u32 s20, 6
  s_cselect_b32 s23, 0x40000000, s23
  s_mov_b32 s22, {SPIN}
  buffer_load_dwordx4 v[40:43], v3, s[36:39], s21 offen sc1
  buffer_load_dwordx4 v[44:47], v3, s[36:39], s23 offen sc1
L_pr:
  s_waitcnt vmcnt(0)
  v_max3_u32 v2, v40, v41, v42
  v_max3_u32 v4, v44, v45, v46
  v_max_u32 v2, v2, v43
  v_max_u32 v4, v4, v47
  v_cmp_eq_u32 s[50:51], -1, v2
  v_cmp_eq_u32 s[52:53], -1, v4
  s_nop 1
  s_or_b64 s[54:55], s[50:51], s[52:53]
  s_cbranch_scc0 L_prok
  s_mov_b64 exec, s[50:51]
  s_cbranch_execz L_pr1
  buffer_load_dwordx4 v[40:43], v3, s[36:39], s21 offen sc1
L_pr1:
  s_mov_b64 exec, s[52:53]
  s_cbranch_execz L_pr2
  buffer_load_dwordx4 v[44:47], v3, s[36:39], s23 offen sc1
L_pr2:
  s_mov_b64 exec, -1
  s_sub_u32 s22, s22, 1
  s_cmp_lg_u32 s22, 0
  s_cbranch_scc1 L_pr
  s_waitcnt vmcnt(0)
L_prok:''')
stamp(11)
a(f'''  ds_write_b128 v3, v[40:43] offset:{RES}
  s_cmp_ge_u32 s20, 6
  s_cbranch_scc1 L_nores2
  ds_write_b128 v3, v[44:47] offset:{RES+8192}
L_nores2:''')
for i in range(4): a(f'  v_lshlrev_b32 v{14+i}, 3, v{14+i}')
a(f'''  s_waitcnt lgkmcnt(0)
  s_barrier
  s_cmp_eq_u32 s20, 7
  s_cbranch_scc1 L_nogather''')
for i in range(4): a(f'  ds_read_b64 v[{40+2*i}:{41+2*i}], v{14+i} offset:{RES}')
a(f'''  s_lshl_b32 s21, s20, 9
  s_add_u32 s21, s21, {PART}
  v_lshl_add_u32 v2, v1, 3, s21
  s_waitcnt lgkmcnt(2)
  v_pk_add_f32 v[40:41], v[40:41], v[42:43]
  s_waitcnt lgkmcnt(0)
  v_pk_add_f32 v[44:45], v[44:45], v[46:47]
  v_pk_add_f32 v[40:41], v[40:41], v[44:45]
  ds_write_b64 v2, v[40:41]
L_nogather:
  s_waitcnt lgkmcnt(0)
  s_barrier
  s_cmp_eq_u32 s20, 0
  s_cbranch_scc1 L_fin''')
stamp(12); stamp_flush(40)
a(f'''  s_endpgm
L_fin:
  v_lshlrev_b32 v2, 3, v1
  v_add_u32 v2, {PART}, v2''')
for w in range(7): a(f'  ds_read_b64 v[{40+2*w}:{41+2*w}], v2 offset:{512*w}')
a('''  s_lshl_b32 s21, s2, 7
  v_lshlrev_b32 v3, 1, v1
  s_mov_b32 s22, 0x0d800000             ; 2^-100
  s_mov_b32 s23, 0x71800000             ; 2^100''')
for w in range(1,7):
    a(f'''  s_waitcnt lgkmcnt({6-w})
  v_pk_add_f32 v[40:41], v[40:41], v[{40+2*w}:{41+2*w}]''')
a(f'''  v_rcp_f32 v42, v40
  v_cmp_le_f32 s[50:51], s22, v40
  v_cmp_ge_f32 s[52:53], s23, v40
  v_cmp_ge_f32 vcc, s23, |v41|
  v_mul_f32 v42, v42, v41
  s_and_b64 s[50:51], s[50:51], s[52:53]
  s_and_b64 s[50:51], s[50:51], vcc
  v_cvt_pk_bf16_f32 v42, v42, v42
  buffer_store_short v42, v3, s[40:43], s21 offen
  s_cmp_eq_u32 s2, 0
  s_cbranch_scc0 L_noep
  v_mov_b32 v9, 0
  s_mov_b64 exec, 1
  buffer_store_dword v8, v9, s[28:31], 0 offen sc1
  s_mov_b64 exec, -1
L_noep:
  s_not_b64 s[50:51], s[50:51]
  s_cbranch_scc1 L_slow''')
if 'clamp' in sys.argv:
    a('''L_clamp:
  s_memrealtime s[98:99]
  s_waitcnt lgkmcnt(0)
  s_sub_u32 s98, s98, s96
  s_cmp_lt_u32 s98, 4000
  s_cbranch_scc1 L_clamp''')
stamp(12); stamp_flush(50)
a('  s_endpgm')
Cb=4; AP0=20; AP1=28; AX=36; AQ0=44; AQ1=52; AC0=60; AC1=76; Q=92; D2=100; X0=104; X1=112
PB=PAR+2048; PH=PAR+2304; PP=PAR+2560
a(f'''L_T:
  s_cmp_ge_u32 s2, 250
  s_cbranch_scc0 L_Tgo
  s_barrier
  s_barrier
  s_barrier
  s_endpgm
L_Tgo:
  s_sub_u32 s21, s20, 8                 ; tw
  v_lshrrev_b32 v2, 4, v1
  v_xor_b32 v2, v2, v1
  v_and_b32 v2, 3, v2
  v_and_b32 v3, 60, v1
  v_or_b32 v2, v2, v3
  v_lshlrev_b32 v2, 4, v2
  s_lshl_b32 s22, s21, 13               ; tw*8KB
  s_add_u32 s23, s22, {TAB}
  s_mov_b32 m0, s23
  s_waitcnt lgkmcnt(0)''')
srd(a,24,6,64000)
for i in range(4): a(f'  buffer_load_dwordx4 v2, s[24:27], s22 offen offset:{1024*i} lds')
a(f'''  s_add_u32 s22, s22, 4096
  s_add_u32 s23, s23, 4096
  s_mov_b32 m0, s23
  s_cmp_lt_u32 s21, 4''')
for i in range(4): a(f'  buffer_load_dwordx4 v2, s[24:27], s22 offen offset:{1024*i} lds')
a(f'''  s_cbranch_scc0 L_Tnopar
  v_lshlrev_b32 v2, 4, v1
  v_lshlrev_b32 v3, 2, v1
  s_cmp_eq_u32 s21, 0
  s_cbranch_scc0 L_Tp1''')
srd(a,28,8,2048)
a(f'''  s_mov_b32 m0, {PAR}
  s_nop 0
  buffer_load_dwordx4 v2, s[28:31], 0 offen lds
  buffer_load_dwordx4 v2, s[28:31], 0 offen offset:1024 lds
  s_branch L_Tnopar
L_Tp1:
  s_cmp_eq_u32 s21, 1
  s_cbranch_scc0 L_Tp2''')
srd(a,28,10,64)
a(f'''  s_mov_b32 m0, {PB}
  s_nop 0
  buffer_load_dword v3, s[28:31], 0 offen lds
  s_branch L_Tnopar
L_Tp2:
  s_cmp_eq_u32 s21, 2
  s_cbranch_scc0 L_Tp3''')
srd(a,28,12,64)
a(f'''  s_mov_b32 m0, {PH}
  s_nop 0
  buffer_load_dword v3, s[28:31], 0 offen lds
  s_branch L_Tnopar
L_Tp3:''')
srd(a,28,14,64)
a(f'''  s_mov_b32 m0, {PP}
  s_nop 0
  buffer_load_dword v3, s[28:31], 0 offen lds
L_Tnopar:
  s_barrier
  v_lshrrev_b32 v2, 5, v1               ; hf
  v_and_b32 v3, 31, v1                  ; n
  s_and_b32 s22, s21, 1                 ; rp
  s_lshr_b32 s21, s21, 1                ; cq''')
for r in range(16): a(f'  v_mov_b32 v{AC0+r}, 0')
a(f'''  v_mov_b32 v0, {PAR}
  v_lshl_add_u32 v120, v2, 9, v0
  v_lshl_add_u32 v120, v3, 1, v120
  v_and_b32 v121, 0x13, v3
  v_and_b32 v122, 4, v3
  v_lshl_or_b32 v121, v122, 1, v121
  v_and_b32 v122, 8, v3
  v_lshrrev_b32 v122, 1, v122
  v_or_b32 v121, v121, v122             ; pi(m)
  v_lshlrev_b32 v121, 6, v121
  v_lshl_add_u32 v122, v2, 4, v0
  v_add_u32 v121, v121, v122
  v_lshl_add_u32 v123, v2, 3, v0
  s_lshl_b32 s23, s2, 2
  s_lshl_b32 s48, s22, 1
  s_add_u32 s23, s23, s48               ; v0
  s_lshl_b32 s48, s23, 6
  s_add_u32 s48, s48, {TAB}
  s_and_b32 s49, s2, 3
  v_xor_b32 v126, s49, v2
  v_lshl_add_u32 v126, v126, 4, s48
  v_xor_b32 v127, 32, v126
  v_bfe_u32 v124, v1, 3, 1
  v_lshlrev_b32 v124, 6, v124
  v_add_u32 v125, v127, v124
  v_add_u32 v124, v126, v124
  s_barrier
  v_bfe_u32 v0, v3, 2, 2
  v_xor_b32 v0, v0, v2
  v_lshlrev_b32 v0, 4, v0
  v_lshl_add_u32 v0, v3, 6, v0
  s_lshl_b32 s49, s21, 14
  s_add_u32 s49, s49, {TAB}
  v_add_u32 v118, s49, v0
  s_waitcnt vmcnt(0)
  s_barrier''')
stamp(5)
for ks in range(2):
    a(f'''  ds_read_b128 v[{Q+4*ks}:{Q+4*ks+3}], v121 offset:{32*ks}
  ds_read_b128 v[{AX+4*ks}:{AX+4*ks+3}], v122 offset:{2304+32*ks}''')
for ks in range(2):
    a(f'''  ds_read_b128 v[{AP0+4*ks}:{AP0+4*ks+3}], v{126+ks}
  ds_read_b128 v[{AP1+4*ks}:{AP1+4*ks+3}], v{126+ks} offset:64''')
a('  s_waitcnt lgkmcnt(4)')
a(f'''  v_mfma_f32_32x32x16_bf16 v[{Cb}:{Cb+15}], v[{Q}:{Q+3}], v[{AX}:{AX+3}], 0
  v_mfma_f32_32x32x16_bf16 v[{Cb}:{Cb+15}], v[{Q+4}:{Q+7}], v[{AX+4}:{AX+7}], v[{Cb}:{Cb+15}]''')
for r in range(8):
    ks,j=r>>3,r&7
    a(f'  ds_read_u16_d16_hi v{AC0+r}, v120 offset:{(16*ks+j)*64}')
a('  s_waitcnt lgkmcnt(4)')
for r in range(8,16):
    ks,j=r>>3,r&7
    a(f'  ds_read_u16_d16_hi v{AC0+r}, v120 offset:{(16*ks+j)*64}')
a(f'''  v_mov_b32 v120, v118
  v_xor_b32 v119, 32, v118
  s_waitcnt lgkmcnt(4)''')
for ks in range(2):
    a(f'''  ds_read_b128 v[{X0+4*ks}:{X0+4*ks+3}], v{124+ks}
  ds_read_b128 v[{AC1+8+4*ks}:{AC1+8+4*ks+3}], v122 offset:{2560+32*ks}''')
for i in range(4):
    a(f'''  ds_read_b64 v[{AC1+2*i}:{AC1+2*i+1}], v123 offset:{2048+16*i}''')
a(f'''  v_mov_b32 v125, v119
  v_mov_b32 v126, 0xffff0000
  s_waitcnt lgkmcnt(8)''')
for i in range(4):
    a(f'''  ds_read_b64 v[{AQ0+2*i}:{AQ0+2*i+1}], v123 offset:{2304+16*i}''')
def lanemask(f):
    m=0
    for l in range(64):
        if f(l): m|=1<<l
    return m
match=lambda l: ((l>>2)&1)==((l>>4)&1)
mu=lanemask(lambda l: match(l) and (l&3)==0)
mp=lanemask(lambda l: match(l) and (l&3)==1)
m0=lanemask(lambda l: match(l) and (l&3)==0 and ((l>>3)&1)==0)
m1=lanemask(lambda l: match(l) and (l&3)==0 and ((l>>3)&1)==1)
for sreg,vreg,m in ((50,116,mu),(52,117,mp),(54,118,m0),(56,119,m1)):
    a(f'''  s_mov_b32 s{sreg}, {m&0xffffffff:#x}
  s_mov_b32 s{sreg+1}, {m>>32:#x}
  v_cndmask_b32 v{vreg}, 0, -1, s[{sreg}:{sreg+1}]''')
for AP in (AP0,AP1):
    for r in range(8):
        a(f'''  v_lshlrev_b32 v2, 16, v{AP+r}
  v_and_b32 v0, v126, v{AP+r}
  v_mul_f32 v2, v2, v{AC0+2*r}
  v_mul_f32 v0, v0, v{AC0+2*r+1}
  v_cvt_pk_bf16_f32 v{AP+r}, v2, v0''')
a('  s_waitcnt lgkmcnt(0)')
for r in range(8):
    P=AC1+8+r
    a(f'''  v_and_b32 v{P}, v117, v{P}
  v_lshlrev_b32 v2, 16, v{P}
  v_and_b32 v0, v126, v{P}
  v_and_or_b32 v2, v{Cb+2*r}, v116, v2
  v_and_or_b32 v0, v{Cb+2*r+1}, v116, v0
  v_lshlrev_b32 v127, 16, v{X0+r}
  v_and_b32 v{X0+r}, v126, v{X0+r}
  v_mul_f32 v2, v2, v127
  v_mul_f32 v0, v0, v{X0+r}
  v_cvt_pk_bf16_f32 v{AX+r}, v2, v0''')
a(f'''  ds_read_b128 v[{X0}:{X0+3}], v120
  ds_read_b128 v[{X0+4}:{X0+7}], v125
  v_mov_b32 v127, 0x7fff7fff''')
for r in range(8):
    a(f'''  v_lshlrev_b32 v{Cb+2*r}, 16, v{AC1+r}
  v_and_b32 v{Cb+2*r+1}, v126, v{AC1+r}
  v_and_b32 v{AC1+r}, v127, v{AC1+r}
  v_and_b32 v{AQ1+r}, v119, v{AQ0+r}
  v_and_b32 v{AQ0+r}, v118, v{AQ0+r}''')
def m16(A,B,C):
    a(f'  v_mfma_f32_16x16x32_bf16 v[{D2}:{D2+3}], v[{A}:{A+3}], v[{B}:{B+3}], {C}')
DD=f'v[{D2}:{D2+3}]'
a('  s_nop 1')
m16(AQ0,AC1,'0'); m16(AQ0+4,AC1+4,DD); m16(AQ1,AC1,DD); m16(AQ1+4,AC1+4,DD)
a(f'''  v_lshrrev_b32 v2, 5, v1
  s_lshl_b32 s22, s22, 1
  v_add_u32 v2, s22, v2
  v_lshlrev_b32 v2, 13, v2
  v_lshl_add_u32 v121, v3, 3, v2
  s_lshl_b32 s21, s21, 11
  v_add_u32 v121, s21, v121
  v_mov_b32 v122, 0x3f38aa3b            ; log2(e)/2
  s_mov_b32 s23, 4
  s_nop 0
  v_mul_f32 v123, v{D2}, v122
  v_sub_f32 v123, 0, v123''')
stamp(6)
def body(X,XN,off,xoff):
    a(f'''  s_waitcnt lgkmcnt(0)
  ds_read_b128 v[{XN}:{XN+3}], v120 offset:{xoff}
  ds_read_b128 v[{XN+4}:{XN+7}], v125 offset:{xoff}''')
    m16(AX,X,'0')
    a(f'''  v_mfma_f32_32x32x16_bf16 v[{AC0}:{AC0+15}], v[{AP0}:{AP0+3}], v[{X}:{X+3}], v[{Cb}:{Cb+15}]
  v_mfma_f32_32x32x16_bf16 v[{AC0}:{AC0+15}], v[{AP0+4}:{AP0+7}], v[{X+4}:{X+7}], v[{AC0}:{AC0+15}]''')
    m16(AX+4,X+4,DD)
    a(f'''  v_mfma_f32_32x32x16_bf16 v[{AC1}:{AC1+15}], v[{AP1}:{AP1+3}], v[{X}:{X+3}], v[{Cb}:{Cb+15}]
  v_mfma_f32_32x32x16_bf16 v[{AC1}:{AC1+15}], v[{AP1+4}:{AP1+7}], v[{X+4}:{X+7}], v[{AC1}:{AC1+15}]
  s_nop 8''')
    for r in range(8): a(f'  v_cvt_pk_bf16_f32 v{Q+r}, |v{AC0+2*r}|, |v{AC0+2*r+1}|')
    a('  s_nop 1')
    m16(AQ0,Q,DD); m16(AQ0+4,Q+4,DD)
    for r in range(8): a(f'  v_cvt_pk_bf16_f32 v{Q+r}, |v{AC1+2*r}|, |v{AC1+2*r+1}|')
    a('  s_nop 1')
    m16(AQ1,Q,DD); m16(AQ1+4,Q+4,DD)
    a(f'''  s_nop 7
  v_fma_f32 v126, v{D2}, v122, v123
  v_exp_f32 v126, v126
  s_nop 0
  v_mul_f32 v127, v126, v{D2+1}
  ds_write_b64 v121, v[126:127] offset:{off}''')
a('L_Tloop:')
body(X0,X1,0,2048); body(X1,X0,256,4096)
a(f'''  v_add_u32 v121, 512, v121
  v_add_u32 v120, 4096, v120
  v_add_u32 v125, 4096, v125
  s_sub_u32 s23, s23, 1
  s_cmp_lg_u32 s23, 0
  s_cbranch_scc1 L_Tloop
  s_cmp_eq_u32 s21, {3<<11}
  s_cbranch_scc0 L_Tnoz
  v_mov_b32 v126, 0
  v_mov_b32 v127, 0
  v_subrev_u32 v121, 256, v121
  v_cmp_le_u32 vcc, 8, v3
  s_and_saveexec_b64 s[50:51], vcc
  ds_write_b64 v121, v[126:127]
  s_mov_b64 exec, s[50:51]
L_Tnoz:
  s_waitcnt lgkmcnt(0)''')
stamp(9)
a('  s_barrier')
stamp_flush(4,True)
a('  s_endpgm')
a('L_slow:')
slow_wave(a,'S')
a('L_end:\n  s_endpgm')
a(kd(N,128))
open(sys.argv[1],'w').write(a.text())
print('LDS',LDSZ,'mode',MODE)
```
